```python
import torch

def _softmax(x, axis=-1):
    return torch.softmax(x, dim=axis)
def _gelu(x):
    return torch.nn.functional.gelu(x, approximate="tanh")
def _silu(x):
    return torch.nn.functional.silu(x)
def _sigmoid(x):
    return torch.sigmoid(x)
def _layernorm(x, axis=-1, eps=1e-5):
    m = x.mean(dim=axis, keepdim=True)
    v = x.var(dim=axis, keepdim=True, unbiased=False)
    return (x - m) / torch.sqrt(v + eps)
def _scatter_add(tgt, idx, src, axis=0):
    return tgt.clone().index_add_(axis, idx, src)
def _segment_sum(src, seg, n):
    out = torch.zeros((n,) + src.shape[1:], dtype=src.dtype)
    return out.index_add_(0, seg, src)
def _pad(x, pw):
    flat = tuple(v for pair in reversed(pw) for v in pair)
    return torch.nn.functional.pad(x, flat)

kernel_name = 'recurrent_scan__spectral_gfnet__glu_gated_bilinear__prompt'

def setup_inputs():

    _w = (lambda a: (lambda t: t.to(torch.bfloat16) if t.is_floating_point() else t)(torch.as_tensor(a)))
    def _A_setup():
        B, S, D = 1, 2048, 1024
        Df = D // 2 + 1
        return {
            "x": _w((lambda *s: torch.randn(*s, dtype=torch.bfloat16) * 0.2)(B, S, D)),
            "w_r": _w((lambda *s: torch.randn(*s, dtype=torch.bfloat16) * 1.6)(S, Df) * 0.02),
            "w_i": _w((lambda *s: torch.randn(*s, dtype=torch.bfloat16) * 1.6)(S, Df) * 0.02),
        }
    _A_in = _A_setup()

    def _B_setup():
        B, S, D, F = 1, 2048, 1024, 3584
        return {
            "x": _w((lambda *s: torch.randn(*s, dtype=torch.bfloat16) * 0.2)(B, S, D)),
            "w_gate": _w((lambda *s: torch.randn(*s, dtype=torch.bfloat16) * 0.8)(D, F) * (D ** -0.5)),
            "w_up": _w((lambda *s: torch.randn(*s, dtype=torch.bfloat16) * 0.8)(D, F) * (D ** -0.5)),
            "w_down": _w((lambda *s: torch.randn(*s, dtype=torch.bfloat16) * 0.8)(F, D) * (F ** -0.5)),
        }
    _B_in = _B_setup()

    return {
        "A_x": _A_in["x"],
        "A_w_r": _A_in["w_r"],
        "A_w_i": _A_in["w_i"],
        "B_x": _B_in["x"],
        "B_w_gate": _B_in["w_gate"],
        "B_w_up": _B_in["w_up"],
        "B_w_down": _B_in["w_down"],
    }

def reference(A_x, A_w_r, A_w_i, B_x, B_w_gate, B_w_up, B_w_down):
    def _A_ref(x, w_r, w_i):
        B, S, D = x.shape
        X = (lambda x, axes=(-2,-1): torch.fft.rfft2(x.float(), dim=axes))(x, axes=(-2, -1))
        W = w_r + 1j * w_i
        X = X * W
        y = (lambda x, s, axes=(-2,-1): torch.fft.irfft2(x, s=s, dim=axes).to(torch.bfloat16))(X, (S, D), axes=(-2, -1))
        return y

    def _B_ref(x, w_gate, w_up, w_down):
        g = torch.einsum("bsd,df->bsf", x, w_gate)
        u = torch.einsum("bsd,df->bsf", x, w_up)
        h = g * u
        return torch.einsum("bsf,fd->bsd", h, w_down)

    x = A_x
    xn = _layernorm(x, axis=-1)
    s = _A_ref(xn, A_w_r, A_w_i)
    g = _silu(_B_ref(xn, B_w_gate, B_w_up, B_w_down))
    return x + s * g
```

```python
import re
TRANS=('v_exp_f32','v_log_f32','v_rcp_f32','v_rsq_f32','v_sqrt_f32','v_sin_f32','v_cos_f32')
def regs(tok):
    tok=tok.strip().lstrip('-')
    if tok.startswith('abs('): tok=tok[4:-1]
    if tok.startswith('|'): tok=tok.strip('|')
    m=re.fullmatch(r'([vsa])\[(\d+):(\d+)\]',tok)
    if m: return {(m.group(1),i) for i in range(int(m.group(2)),int(m.group(3))+1)}
    m=re.fullmatch(r'([vsa])(\d+)',tok)
    if m: return {(m.group(1),int(m.group(2)))}
    if tok=='vcc': return {('s','vcc')}
    if tok=='m0': return {('s','m0')}
    return set()
class I:
    def __init__(s,text):
        s.text=text; t=text.split(';')[0].strip()
        s.label=t.endswith(':'); s.raw=t.startswith('.') or not t
        p=t.split(None,1); s.op=p[0] if p else ''
        ops=[]
        if len(p)>1: ops=[o.strip().split(' ')[0] for o in p[1].split(',')]
        s.ops=ops; o=s.op
        s.mfma=o.startswith('v_mfma'); s.valu=o.startswith('v_') and not s.mfma
        s.ds=o.startswith('ds_'); s.vmem=o.startswith('buffer_') or o.startswith('global_')
        s.salu=o.startswith('s_'); s.dma=s.vmem and t.endswith(' lds') or (s.vmem and ' lds ' in t)
        R=[regs(x) for x in ops]; U=lambda l:set().union(*l) if l else set()
        s.w=set(); s.r=set(); s.ab=set(); s.c=set(); s.stdata=set()
        if s.mfma:
            s.w=R[0]; s.ab=R[1]|R[2]; s.c=R[3]; s.r=s.ab|s.c; s.p8='32x32' in o
        elif s.valu:
            s.w=R[0]; s.r=U(R[1:])
            if 'permlane' in o: s.w=R[0]|R[1]; s.r=s.w
            if o.startswith(('v_fmac','v_dot2c','v_writelane')): s.r|=R[0]
            if '_co_' in o: s.w=R[0]|R[1]; s.r=U(R[2:])
        elif s.ds:
            if 'write' in o: s.r=U(R)
            else: s.w=R[0]; s.r=U(R[1:])
        elif s.vmem:
            if s.dma: s.r=U(R)|{('s','m0')}
            elif 'store' in o:
                s.r=U(R)
                if 'x4' in o or 'x3' in o: s.stdata=R[0] if o.startswith('buffer') else R[1]
            else: s.w=R[0]; s.r=U(R[1:])
        elif s.salu and ops and not o.startswith(('s_cmp','s_waitcnt','s_nop','s_cbranch','s_branch','s_setprio','s_sleep')):
            s.w=R[0]; s.r=U(R[1:])
        s.states=(int(ops[0])+1) if o=='s_nop' else (0 if (s.label or s.raw) else 1)
def need(a,b):
    n=0; V=lambda x:{r for r in x if r[0]!='s'}; S=lambda x:{r for r in x if r[0]=='s'}
    if a.valu:
        if b.mfma and V(a.w)&b.r: n=max(n,2)
        if b.valu:
            if a.op.startswith(TRANS) and a.w&b.r: n=max(n,1)
            if ('permlane' in b.op or 'dpp' in b.text or 'row_' in b.text) and V(a.w)&b.r: n=max(n,2)
            if b.op.startswith(('v_readfirstlane','v_readlane')) and a.w&b.r: n=max(n,1)
            if S(a.w)&b.r: n=max(n,2)
        if b.vmem and S(a.w)&b.r: n=max(n,5)
    if a.mfma:
        big=12 if a.p8 else 8
        if b.mfma:
            if a.w&b.ab: n=max(n,big)
            if a.w&b.c and (a.w!=b.c): n=max(n,big-2)
            if a.w&b.w and not (a.w&b.c): n=max(n,big)
        elif (b.valu or b.ds or b.vmem) and a.w&(b.r|b.w): n=max(n,big)
        if b.valu and a.c&b.w: n=max(n,7 if a.p8 else 3)
    if a.salu and ('s','m0') in a.w and b.dma: n=max(n,1)
    if a.stdata and a.stdata&b.w and not b.salu: n=max(n,2)
    return n
class Asm:
    def __init__(s): s.L=[]; s.nops=0
    def __call__(s,text):
        for t in text.split('\n'):
            t=t.strip()
            if not t: continue
            b=I(t)
            if not (b.label or b.raw):
                d=0; pad=0
                for a in reversed(s.L):
                    if d>=13: break
                    if a.op in('s_endpgm','s_branch'): break
                    pad=max(pad,need(a,b)-d); d+=a.states
                if pad>0: s.L.append(I('s_nop %d'%(pad-1))); s.nops+=pad
            s.L.append(b)
    def check_branches(s):
        lab={i.text.split(';')[0].strip()[:-1]:k for k,i in enumerate(s.L) if i.label}
        for k,i in enumerate(s.L):
            if i.op.startswith(('s_cbranch','s_branch')):
                seq=s.L[max(0,k-14):k+1]; t=lab[i.ops[0]]; nxt=s.L[t:t+16]
                for y,b in enumerate(nxt):
                    if b.label or b.raw: continue
                    d=sum(q.states for q in nxt[:y])
                    for a in reversed(seq):
                        assert need(a,b)<=d,('branch hazard',a.text,b.text)
                        d+=a.states
                    if b.op in('s_endpgm','s_branch'): break
    def text(s):
        s.check_branches()
        return '\n'.join((i.text if (i.label or i.raw) else '    '+i.text) for i in s.L)+'\n'
def vr(b,n=1): return 'v%d'%b if n==1 else 'v[%d:%d]'%(b,b+n-1)
def sr(b,n=1): return 's%d'%b if n==1 else 's[%d:%d]'%(b,b+n-1)
import struct
def fx(x): return '0x%08x'%struct.unpack('<I',struct.pack('<f',x))[0]
```

```python
from asmlib import *
XN_OFF=0; A0_OFF=4<<20; H_OFF=8<<20; T_OFF=24<<20
def srd(a,d,b,off,size):
    if off: a(f's_add_u32 s{d}, s{b}, {off}\ns_addc_u32 s{d+1}, s{b+1}, 0')
    else: a(f's_mov_b32 s{d}, s{b}\ns_mov_b32 s{d+1}, s{b+1}')
    a(f's_mov_b32 s{d+2}, {size}\ns_mov_b32 s{d+3}, 0x20000')
def head(a,name):
    a(f'.globl {name}\n.p2align 8\n.type {name},@function\n{name}:')
def desc(name,vg,acc=None):
    acc=acc or (vg+3)//4*4
    return f'''.p2align 6
.amdhsa_kernel {name}
  .amdhsa_next_free_vgpr {vg}
  .amdhsa_next_free_sgpr 96
  .amdhsa_accum_offset {acc}
  .amdhsa_group_segment_fixed_size 0
  .amdhsa_kernarg_size 80
  .amdhsa_user_sgpr_count 2
  .amdhsa_user_sgpr_kernarg_segment_ptr 1
  .amdhsa_system_sgpr_workgroup_id_x 1
.end_amdhsa_kernel
'''
def trlane(a,d,l,t,hmul):
    a(f'''v_lshrrev_b32 v{d}, 5, v{l}
    v_mul_u32_u24 v{d}, {hmul}, v{d}
    v_bfe_u32 v{t}, v{l}, 2, 2
    v_lshl_add_u32 v{d}, v{t}, 6, v{d}
    v_bfe_u32 v{t}, v{l}, 4, 1
    v_lshl_add_u32 v{d}, v{t}, 5, v{d}
    v_and_b32 v{t}, 3, v{l}
    v_lshl_add_u32 v{d}, v{t}, 3, v{d}''')
def k1(a):
    head(a,'k1_kernel')
    a('''s_cmp_ge_u32 s2, 256
    s_cbranch_scc1 k1_end
    s_load_dwordx2 s[4:5], s[0:1], 0
    s_load_dwordx2 s[6:7], s[0:1], 72
    v_lshrrev_b32 v1, 6, v0
    v_and_b32 v0, 63, v0
    v_readfirstlane_b32 s3, v1
    s_and_b32 s20, s2, 31
    s_lshr_b32 s21, s2, 5''')
    for tg in range(8):
        a(f's_add_u32 s{24+tg}, s21, {tg}\ns_and_b32 s{24+tg}, s{24+tg}, 7\ns_lshl_b32 s{24+tg}, s{24+tg}, 8')
    a('''v_and_b32 v3, 15, v0
    v_lshl_add_u32 v2, v1, 4, v3
    v_mov_b32 v160, v2
    v_lshlrev_b32 v2, 16, v2
    s_lshl_b32 s22, s20, 11
    v_add_u32 v2, s22, v2
    v_lshrrev_b32 v161, 4, v0
    v_lshl_add_u32 v2, v161, 4, v2
    s_waitcnt lgkmcnt(0)''')
    srd(a,8,4,0,4<<20); srd(a,12,6,XN_OFF,4<<20); srd(a,16,6,A0_OFF,4<<20)
    for t in range(32):
        a(f'buffer_load_dwordx4 {vr(16+4*t,4)}, v2, s[8:11], s{24+(t>>2)} offen offset:{(t&3)*64}')
    for i in range(4): a(f'v_mov_b32 v{12+i}, 0x3f803f80')
    a('''s_and_b32 s23, s3, 1
    s_lshl_b32 s23, s23, 5
    v_and_b32 v162, 31, v0
    v_add_u32 v162, s23, v162
    v_lshrrev_b32 v163, 1, v162
    v_and_b32 v164, 1, v162
    v_cmp_eq_u32 vcc, 1, v162
    v_cndmask_b32 v163, v163, 32, vcc
    v_cndmask_b32 v164, v164, 0, vcc
    v_cvt_f32_u32 v163, v163
    v_cvt_f32_u32 v164, v164
    v_mul_f32 v163, 0x3c800000, v163
    v_mul_f32 v164, 0x3e800000, v164
    v_lshrrev_b32 v165, 5, v0
    v_lshlrev_b32 v166, 3, v165
    v_cvt_f32_u32 v166, v166
    v_fma_f32 v164, v166, v163, v164''')
    for s in range(4):
        for e in range(0,8,2):
            a(f'''v_fmamk_f32 v166, v163, {fx(16*s+e)}, v164
            v_fmamk_f32 v167, v163, {fx(16*s+e+1)}, v164
            v_cos_f32 v166, v166
            v_cos_f32 v167, v167
            v_cvt_pk_bf16_f32 v{144+4*s+e//2}, v166, v167''')
    a('''s_lshl_b32 s22, s20, 17
    s_lshl_b32 s32, s21, 13
    s_add_u32 s22, s22, s32
    v_lshrrev_b32 v168, 5, v160
    v_lshlrev_b32 v168, 16, v168
    v_and_b32 v166, 31, v160
    v_lshl_add_u32 v168, v166, 4, v168
    v_lshl_add_u32 v168, v161, 9, v168
    v_add_u32 v168, s22, v168
    v_lshrrev_b32 v169, 2, v160
    v_lshlrev_b32 v169, 10, v169
    v_and_b32 v166, 3, v160
    v_lshl_add_u32 v169, v166, 6, v169
    v_lshl_add_u32 v169, v161, 4, v169''')
    trlane(a,170,0,166,2048)
    a('''s_lshr_b32 s33, s3, 1
    s_lshl_b32 s34, s33, 9
    v_add_u32 v170, s34, v170
    v_lshlrev_b32 v171, 16, v162
    v_lshl_add_u32 v171, v165, 4, v171
    s_lshl_b32 s22, s20, 11
    s_lshl_b32 s32, s21, 8
    s_add_u32 s22, s22, s32
    s_lshl_b32 s32, s33, 7
    s_add_u32 s22, s22, s32
    v_add_u32 v171, s22, v171
    v_lshrrev_b32 v172, 2, v3
    v_lshl_add_u32 v172, v172, 4, v3
    v_lshlrev_b32 v172, 2, v172''')
    for t in range(32):
        a(f's_waitcnt vmcnt({31-t})')
        d=vr(16+4*t,4)
        a(f'v_mfma_f32_16x16x32_bf16 v[4:7], v[12:15], {d}, {"0" if t==0 else "v[4:7]"}')
        a(f'v_mfma_f32_16x16x32_bf16 v[8:11], {d}, {d}, {"0" if t==0 else "v[8:11]"}')
    a('''v_and_b32 v166, 3, v0
    v_cmp_eq_u32 vcc, 1, v166
    v_cndmask_b32 v8, v8, v9, vcc
    v_cmp_eq_u32 vcc, 2, v166
    v_cndmask_b32 v8, v8, v10, vcc
    v_cmp_eq_u32 vcc, 3, v166
    v_cndmask_b32 v8, v8, v11, vcc
    ds_bpermute_b32 v8, v172, v8
    v_mul_f32 v4, 0x3a800000, v4
    v_mul_f32 v5, v4, v4
    v_cvt_pk_bf16_f32 v4, v4, v4
    v_and_b32 v4, 0xffff0000, v4
    s_waitcnt lgkmcnt(0)
    v_mul_f32 v8, 0x3a800000, v8
    v_sub_f32 v8, v8, v5
    v_max_f32 v8, 0, v8
    v_cvt_pk_bf16_f32 v8, v8, v8
    v_and_b32 v8, 0xffff0000, v8
    v_add_f32 v8, 0x3727c5ac, v8
    v_cvt_pk_bf16_f32 v8, v8, v8
    v_and_b32 v8, 0xffff0000, v8
    v_sqrt_f32 v8, v8
    v_cvt_pk_bf16_f32 v8, v8, v8
    v_and_b32 v8, 0xffff0000, v8
    v_rcp_f32 v8, v8''')
    for t in range(4):
        for j in range(4):
            r=16+4*t+j
            a(f'''v_lshlrev_b32 v5, 16, v{r}
            v_and_b32 v6, 0xffff0000, v{r}
            v_sub_f32 v5, v5, v4
            v_sub_f32 v6, v6, v4
            v_cvt_pk_bf16_f32 v7, v5, v6
            v_lshlrev_b32 v5, 16, v7
            v_and_b32 v6, 0xffff0000, v7
            v_mul_f32 v5, v5, v8
            v_mul_f32 v6, v6, v8
            v_cvt_pk_bf16_f32 v{r}, v5, v6''')
        a(f'ds_write_b128 v169, {vr(16+4*t,4)} offset:{t*256}')
        if t==2: a('v_add_u32 v168, 4096, v168')
        a(f'buffer_store_dwordx4 {vr(16+4*t,4)}, v168, s[12:15], 0 offen offset:{(t&1)*2048}')
    a('s_waitcnt lgkmcnt(0)\ns_barrier')
    for nb in range(2):
        for s in range(4):
            for j in range(2):
                a(f'ds_read_b64_tr_b16 {vr(32+nb*16+s*4+j*2,2)}, v170 offset:{s*4096+j*1024+nb*256}')
    for nb in range(2):
        a(f's_waitcnt lgkmcnt({8-8*nb})')
        for s in range(4):
            acc=vr(64+16*nb,16)
            a(f'v_mfma_f32_32x32x16_bf16 {acc}, {vr(32+nb*16+s*4,4)}, {vr(144+4*s,4)}, {"0" if s==0 else acc}')
    for nb in range(2):
        for pp in range(2):
            b=64+16*nb+8*pp; d=96+8*nb+4*pp
            for j in range(4): a(f'v_cvt_pk_bf16_f32 v{d+j}, v{b+2*j}, v{b+2*j+1}')
            a(f'v_permlane32_swap_b32 v{d}, v{d+2}\nv_permlane32_swap_b32 v{d+1}, v{d+3}')
            a(f'buffer_store_dwordx4 {vr(d,4)}, v171, s[16:19], 0 offen offset:{nb*64+pp*32}')
    a('k1_end:\ns_endpgm')
```

```python
from k1 import *
M32='v_mfma_f32_32x32x16_bf16'
def k2(a,NS=4,fft=True):
    head(a,'k2_kernel')
    a('''s_cmp_ge_u32 s2, 256
    s_cbranch_scc1 k2_end
    s_load_dwordx4 s[36:39], s[0:1], 32
    s_load_dwordx4 s[40:43], s[0:1], 8
    s_load_dwordx2 s[6:7], s[0:1], 72
    v_lshrrev_b32 v1, 6, v0
    v_and_b32 v0, 63, v0
    v_readfirstlane_b32 s3, v1
    s_cmp_lt_u32 s2, 32
    s_cbranch_scc1 k2_fft
    s_lshr_b32 s30, s2, 3
    s_sub_u32 s30, s30, 4
    s_and_b32 s28, s2, 1
    s_lshl_b32 s28, s28, 2
    s_and_b32 s31, s30, 3
    s_add_u32 s28, s28, s31
    s_bfe_u32 s29, s2, 0x20001
    s_mul_i32 s29, s29, 7
    s_lshr_b32 s31, s30, 2
    s_add_u32 s29, s29, s31
    v_lshlrev_b32 v2, 4, v0
    v_bfe_u32 v4, v0, 2, 2
    v_mul_u32_u24 v3, 7168, v4
    v_lshrrev_b32 v4, 4, v0
    v_lshl_add_u32 v3, v4, 6, v3
    v_and_b32 v4, 3, v0
    v_lshl_add_u32 v3, v4, 4, v3
    s_lshl_b32 s32, s28, 3
    s_add_u32 s32, s32, s3
    s_lshl_b32 s32, s32, 16
    s_mul_i32 s33, s3, 4*7168
    s_lshl_b32 s34, s29, 8
    s_add_u32 s33, s33, s34
    s_lshl_b32 s34, s3, 11
    s_lshl_b32 s35, s3, 10
    s_add_u32 s35, s35, 16384
    s_waitcnt lgkmcnt(0)''')
    srd(a,8,6,XN_OFF,4<<20); srd(a,12,36,0,7168*1024); srd(a,16,38,0,7168*1024); srd(a,20,6,H_OFF,2048*3584*2)
    def loads(slot):
        o=slot*32768
        return [f's_add_u32 m0, s35, {o}\nbuffer_load_dwordx4 v3, s[12:15], s33 offen lds',
                f's_add_u32 m0, s35, {o+8192}\nbuffer_load_dwordx4 v3, s[16:19], s33 offen lds\ns_add_u32 s33, s33, 32*7168',
                f's_add_u32 m0, s34, {o}\nbuffer_load_dwordx4 v2, s[8:11], s32 offen lds',
                'buffer_load_dwordx4 v2, s[8:11], s32 offen offset:1024 lds\ns_add_u32 s32, s32, 2048']
    for st in range(NS):
        for x in loads(st): a(x)
    trlane(a,8,0,4,2048)
    a('''s_and_b32 s30, s3, 3
    s_lshr_b32 s31, s3, 2
    s_lshl_b32 s44, s30, 8
    s_add_u32 s44, s44, 16384
    v_add_u32 v8, s44, v8
    s_lshl_b32 s44, s31, 13
    v_add_u32 v5, s44, v2
    v_add_u32 v6, 0x10000, v5
    v_add_u32 v7, 0x20000, v5
    v_add_u32 v9, 0x10000, v8
    v_add_u32 v10, 0x20000, v8''')
    ACC=128; FR=16
    for i in range(128): a(f'v_mov_b32 v{ACC+i}, 0')
    def rd(slot,kb):
        o=(slot&1)*32768; b=FR+kb*24; r=[]
        W=[f'ds_read_b64_tr_b16 {vr(b+16+mat*4+j*2,2)}, v{8+slot//2} offset:{o+mat*8192+(4*kb+j)*1024}' for mat in range(2) for j in range(2)]
        X=[f'ds_read_b128 {vr(b+4*pb,4)}, v{5+slot//2} offset:{o+pb*2048+kb*1024}' for pb in range(4)]
        return W[:2]+X[:1]+W[2:]+X[1:]
    def mm(kb,R,L):
        b=FR+kb*24
        for pb in range(4):
            for mat in range(2):
                acc=vr(ACC+pb*32+mat*16,16)
                a(f'{M32} {acc}, {vr(b+16+mat*4,4)}, {vr(b+4*pb,4)}, {acc}')
                for _ in range(2):
                    if R: a(R.pop(0))
                if not R and L and pb>=2: a(L.pop(0))
    a(f's_waitcnt vmcnt({4*(NS-1)})\ns_barrier')
    for x in rd(0,0): a(x)
    def stage(slot,ld,last,vm):
        a('s_waitcnt lgkmcnt(0)')
        mm(0,rd(slot,1),[])
        a('s_waitcnt lgkmcnt(0)')
        if not last: a(f's_waitcnt vmcnt({vm})\ns_barrier')
        mm(1,[] if last else rd((slot+1)%NS,0),loads(slot) if ld else [])
    nst=32; nloop=(nst-NS)//NS; rem=nst-nloop*NS
    a(f's_mov_b32 s45, {nloop}\nk2_loop:')
    for u in range(NS): stage(u,True,False,4*(NS-2))
    a('s_sub_u32 s45, s45, 1\ns_cmp_lg_u32 s45, 0\ns_cbranch_scc1 k2_loop')
    for u in range(rem):
        left=rem-1-u
        stage(u%NS,left>=NS,left==0,4*max(0,min(NS-2,left-1)))
    a('''s_lshl_b32 s32, s28, 3
    s_lshl_b32 s33, s31, 2
    s_add_u32 s32, s32, s33
    s_mul_i32 s32, s32, 224
    s_lshl_b32 s33, s29, 3
    s_add_u32 s32, s32, s33
    s_lshl_b32 s33, s30, 1
    s_add_u32 s32, s32, s33
    s_lshl_b32 s32, s32, 10''')
    for pb in range(4):
        g=ACC+pb*32
        for s in range(2):
            for i in range(8*s,8*s+8): a(f'v_mul_f32 v{g+i}, v{g+i}, v{g+16+i}')
            d=64+pb*8+s*4
            for j in range(4): a(f'v_cvt_pk_bf16_f32 v{d+j}, v{g+8*s+2*j}, v{g+8*s+2*j+1}')
            a(f'buffer_store_dwordx4 {vr(d,4)}, v2, s[20:23], s32 offen offset:{1024*s}')
        a('s_add_u32 s32, s32, 224*1024')
    a('s_endpgm\nk2_fft:')
    if fft: phaseB(a)
    a('k2_end:\ns_endpgm')
    return 256, max(NS*32768,131072)
def cmm(a,dre,dim,xre,xim,P,Q,R,T,dataA=True):
    def one(d,x,c,first):
        o=(vr(x,4),vr(c,4)) if dataA else (vr(c,4),vr(x,4))
        a(f'{M32} {vr(d,16)}, {o[0]}, {o[1]}, {"0" if first else vr(d,16)}')
    for s in range(2): one(dre,xre+4*s,P+4*s,s==0)
    for s in range(2): one(dre,xim+4*s,Q+4*s,False)
    for s in range(2): one(dim,xre+4*s,R+4*s,s==0)
    for s in range(2): one(dim,xim+4*s,T+4*s,False)
def phaseB(a):
    P,Q,R,T=16,24,32,40; C,SP,SN=48,56,64; TC,TS=72,88; X=104; D=120; WR,WI=152,168; WX=184; X2=188; D2=204
    a('s_waitcnt lgkmcnt(0)')
    srd(a,8,6,A0_OFF,4<<20); srd(a,12,40,0,2048*1026); srd(a,16,42,0,2048*1026); srd(a,20,6,T_OFF,4<<20)
    a('''v_lshrrev_b32 v2, 2, v0
    v_lshlrev_b32 v2, 11, v2
    v_and_b32 v3, 3, v0
    v_lshl_add_u32 v2, v3, 4, v2
    s_lshl_b32 s28, s2, 17
    s_lshl_b32 s29, s3, 8
    s_add_u32 s28, s28, s29
    s_lshl_b32 s29, s3, 14''')
    for al in range(4):
        for pl in range(2):
            for u in range(2):
                a(f's_add_u32 m0, s29, {al*4096+pl*2048+u*1024}\ns_add_u32 s30, s28, {pl*65536+u*32768+al*64}\nbuffer_load_dwordx4 v2, s[8:11], s30 offen lds')
    a('''v_lshrrev_b32 v4, 5, v0
    v_and_b32 v5, 31, v0
    v_lshlrev_b32 v6, 1, v5
    v_lshl_add_u32 v6, v4, 8, v6
    v_sub_u32 v7, 320, v6
    v_mov_b32 v8, 0
    v_cmp_eq_u32 vcc, 0, v0
    v_cndmask_b32 v9, 1.0, 0.5, vcc
    v_cndmask_b32 v10, 0, 0.5, vcc
    s_lshl_b32 s31, s3, 8
    s_add_u32 s31, s31, s2
    s_mov_b32 s32, 4
    s_cmp_lg_u32 s2, 0
    s_cbranch_scc1 pb_0
    s_add_u32 s31, s31, 32
    s_cmp_lt_u32 s3, 4
    s_cbranch_scc1 pb_0
    s_sub_u32 s31, s31, 1056
    s_cmp_lg_u32 s3, 4
    s_cbranch_scc1 pb_0
    s_mov_b32 s32, 5
    pb_0:''')
    def wload():
        a('''s_sub_u32 s34, 2048, s31
        s_and_b32 s34, s34, 2047
        s_mul_i32 s33, s31, 1026
        s_mul_i32 s34, s34, 1026''')
        for r in range(16):
            for w,s in ((WR,12),(WI,16)):
                if r<8: a(f'buffer_load_short_d16_hi v{w+r}, v6, {sr(s,4)}, s33 offen offset:{(r&3)*64+(r>>2)*512}')
                else: a(f'buffer_load_short_d16_hi v{w+r}, v7, {sr(s,4)}, s34 offen offset:{(3-(r&3))*64+(3-(r>>2))*512}')
        a(f'''buffer_load_short_d16_hi v{WX}, v8, s[12:15], s34 offen
        buffer_load_short_d16_hi v{WX+1}, v8, s[16:19], s34 offen
        buffer_load_short_d16_hi v{WX+2}, v8, s[12:15], s33 offen offset:1024
        buffer_load_short_d16_hi v{WX+3}, v8, s[16:19], s33 offen offset:1024''')
    for i in range(36): a(f'v_mov_b32 v{WR+i}, 0')
    wload()
    def trig(step,base,kf,amp=None,fix=None,dst=(C,SP,SN)):
        for s in range(2):
            for e in range(0,8,2):
                b=base[s] if isinstance(base,tuple) else base
                a(f'v_fmamk_f32 v{D}, v{step}, {fx(kf(s,e))}, v{b}\nv_fmamk_f32 v{D+1}, v{step}, {fx(kf(s,e+1))}, v{b}')
                a(f'v_cos_f32 v{D+2}, v{D}\nv_cos_f32 v{D+3}, v{D+1}\nv_sin_f32 v{D+4}, v{D}\nv_sin_f32 v{D+5}, v{D+1}')
                if amp:
                    for i in range(2,6): a(f'v_mul_f32 v{D+i}, {fx(amp)}, v{D+i}')
                if fix and s==1 and e==0: fix()
                i=4*s+e//2
                a(f'v_cvt_pk_bf16_f32 v{dst[0]+i}, v{D+2}, v{D+3}\nv_cvt_pk_bf16_f32 v{dst[1]+i}, v{D+4}, v{D+5}\nv_xor_b32 v{dst[2]+i}, 0x80008000, v{dst[1]+i}')
    a('''v_lshlrev_b32 v11, 6, v5
    v_add_u32 v11, s2, v11
    s_cmp_lg_u32 s2, 0
    s_cbranch_scc1 pb_1
    v_add_u32 v12, 32, v11
    v_subrev_u32 v11, 1024, v11
    v_cmp_gt_u32 vcc, 16, v5
    v_cndmask_b32 v11, v11, v12, vcc
    pb_1:
    v_cvt_f32_u32 v11, v11
    v_mul_f32 v11, 0x3a000000, v11
    v_lshlrev_b32 v12, 3, v4
    v_cvt_f32_u32 v12, v12
    v_mul_f32 v12, v12, v11''')
    trig(11,12,lambda s,e:16*s+e,dst=(P,Q,R))
    for i in range(8): a(f'v_mov_b32 v{T+i}, v{P+i}')
    a('s_cmp_lg_u32 s2, 0\ns_cbranch_scc1 pb_2\nv_cmp_gt_u32 vcc, 16, v5\nv_cmp_eq_u32 s[46:47], 16, v5\nv_mov_b32 v13, 0xbf803f80')
    for i in range(8):
        a(f'''v_cndmask_b32 v{Q+i}, 0, v{P+i}, vcc
        v_cndmask_b32 v{T+i}, 0, v{R+i}, vcc
        v_cndmask_b32 v{P+i}, v{P+i}, 0, vcc
        v_cndmask_b32 v{R+i}, v{R+i}, 0, vcc
        v_cndmask_b32 v{R+i}, v{R+i}, v13, s[46:47]''')
    a('pb_2:')
    a('''v_cvt_f32_u32 v11, v5
    v_mul_f32 v11, 0x3d000000, v11
    v_lshlrev_b32 v12, 2, v4
    v_cvt_f32_u32 v12, v12
    v_mul_f32 v12, v12, v11''')
    trig(11,12,lambda s,e:16*s+(e&3)+8*(e>>2))
    a('v_mul_f32 v11, 0x3d000000, v11\nv_mul_f32 v12, 0x3d000000, v12')
    for r in range(16):
        a(f'v_fmamk_f32 v{D}, v11, {fx((r&3)+8*(r>>2))}, v12\nv_cos_f32 v{TC+r}, v{D}\nv_sin_f32 v{TS+r}, v{D}')
    trlane(a,2,0,14,512)
    a('''v_add_u32 v2, s29, v2
    s_lshl_b32 s30, s3, 4
    s_and_b32 s30, s30, 0x30
    s_or_b32 s35, s30, s29
    v_lshlrev_b32 v3, 6, v5
    v_bfe_u32 v14, v5, 1, 3
    v_xor_b32 v14, v14, v4
    v_lshl_add_u32 v3, v14, 3, v3
    v_and_b32 v12, 0xff, v3
    v_xor_b32 v3, s35, v3
    v_lshl_add_u32 v12, v5, 12, v12
    s_lshl_b32 s44, s3, 8
    s_or_b32 s44, s44, s30
    v_xor_b32 v12, s44, v12
    v_bfe_u32 v14, v0, 3, 1
    v_lshl_add_u32 v15, v4, 2, v14
    v_lshlrev_b32 v15, 3, v15
    v_xor_b32 v13, v2, v15
    v_xor_b32 v13, s30, v13
    v_lshl_add_u32 v15, v4, 1, v14
    v_lshlrev_b32 v15, 3, v15
    v_and_b32 v11, 0xff, v2
    v_xor_b32 v11, v11, v15
    v_bfe_u32 v14, v0, 2, 2
    v_lshl_add_u32 v14, v4, 2, v14
    v_lshl_add_u32 v11, v14, 12, v11
    v_xor_b32 v11, s44, v11''')
    def pack(d,x):
        for i in range(16): a(f'v_cvt_pk_bf16_f32 v{x+i}, v{d+2*i}, v{d+2*i+1}')
    XB=(X,X2); DB=(D,D2); O=236
    def srd_f(al):
        a(f's_waitcnt vmcnt({36+4*(3-al)})')
        for pl in range(2):
            for s in range(2):
                for j in range(2): a(f'ds_read_b64_tr_b16 {vr(XB[al&1]+8*pl+4*s+2*j,2)}, v2 offset:{al*4096+pl*2048+s*1024+j*256}')
    def swr_f(al):
        pack(DB[al&1],O)
        for g in range(4):
            a(f'v_xor_b32 v14, {al*64^((2*g^(al>>1))*8)}, v3')
            for pl in range(2): a(f'ds_write_b64 v14, {vr(O+8*pl+2*g,2)} offset:{al*4096+pl*2048}')
    def sstage(rdf,wrf):
        rdf(0)
        for al in range(4):
            a('s_waitcnt lgkmcnt(0)')
            if al<3: rdf(al+1)
            cmm(a,DB[al&1],DB[al&1]+16,XB[al&1],XB[al&1]+8,P,Q,R,T)
            if al>0: wrf(al-1)
        wrf(3)
    sstage(srd_f,swr_f)
    a('s_mov_b32 s45, 0\ns_waitcnt lgkmcnt(0)\ns_barrier\npb_row:')
    a('''s_and_b32 s46, s45, 3
    s_lshr_b32 s47, s46, 1
    s_lshl_b32 s47, s47, 3
    s_lshl_b32 s46, s46, 6
    s_or_b32 s46, s46, s47
    v_xor_b32 v15, s46, v11''')
    for s in range(2):
        for j in range(2):
            a(f'v_xor_b32 v14, {s*65536+j*32768+j*32}, v15')
            for pl in range(2): a(f'ds_read_b64_tr_b16 {vr(X+8*pl+4*s+2*j,2)}, v14 offset:{pl*2048}')
    def cmul(cr,ci,sg):
        for r in range(0,16,2):
            for q in range(2):
                i=r+q; n=sg(i)
                a(f'v_mul_f32 v{O+q}, v{D+i}, v{cr+i}\nv_mul_f32 v{O+2+q}, v{D+16+i}, v{cr+i}')
                a(f'v_fma_f32 v{O+q}, {"-" if n>0 else ""}v{D+16+i}, v{ci+i}, v{O+q}\nv_fma_f32 v{O+2+q}, {"" if n>0 else "-"}v{D+i}, v{ci+i}, v{O+2+q}')
            a(f'v_cvt_pk_bf16_f32 v{X+r//2}, v{O}, v{O+1}\nv_cvt_pk_bf16_f32 v{X+8+r//2}, v{O+2}, v{O+3}')
    a('s_waitcnt lgkmcnt(0)')
    cmm(a,D,D+16,X,X+8,C,SP,SN,C)
    cmul(TC,TS,lambda i:-1)
    cmm(a,D,D+16,X,X+8,C,SP,SN,C,False)
    a(f'''s_waitcnt vmcnt(0)
    v_mul_f32 v{WR}, v{WR}, v9
    v_mul_f32 v{WI}, v{WI}, v9
    v_mul_f32 v{WR+8}, v{WR+8}, v9
    v_mul_f32 v{WI+8}, v{WI+8}, v9
    v_fmac_f32 v{WR}, v{WX}, v10
    v_fma_f32 v{WI}, -v{WX+1}, v10, v{WI}
    v_fmac_f32 v{WR+8}, v{WX+2}, v10
    v_fma_f32 v{WI+8}, -v{WX+3}, v10, v{WI+8}''')
    cmul(WR,WI,lambda i:1 if i<8 else -1)
    a(f'''v_mov_b32 v{WR}, 0
    v_mov_b32 v{WI}, 0
    v_mov_b32 v{WR+8}, 0
    v_mov_b32 v{WI+8}, 0
    s_add_u32 s31, s31, 64
    s_cmp_eq_u32 s45, 3
    s_cselect_b32 s31, 1024, s31''')
    cmm(a,D,D+16,X,X+8,C,SN,SP,C)
    wload()
    cmul(TC,TS,lambda i:1)
    cmm(a,D,D+16,X,X+8,C,SN,SP,C)
    a('v_xor_b32 v15, s46, v12')
    pack(D,X)
    a('s_cmp_eq_u32 s45, 4\ns_cbranch_scc1 pb_3')
    for g in range(4): a(f'v_xor_b32 v14, {16*g}, v15\nds_write_b64 v14, {vr(X+2*g,2)}')
    a('pb_3:\ns_sub_u32 s47, s32, s45\ns_cmp_eq_u32 s47, 5\ns_cbranch_scc1 pb_4')
    for g in range(4): a(f'v_xor_b32 v14, {16*g}, v15\nds_write_b64 v14, {vr(X+8+2*g,2)} offset:2048')
    a('pb_4:\ns_add_u32 s45, s45, 1\ns_cmp_lt_u32 s45, s32\ns_cbranch_scc1 pb_row')
    a('''s_add_u32 s47, s2, 1024
    s_cmp_eq_u32 s2, 0
    s_cselect_b32 s46, 32, s2
    s_cselect_b32 s47, 0, s47
    s_cselect_b32 s48, -1, 0
    s_mov_b32 s49, 0
    v_cvt_f32_u32 v11, v5
    v_mul_f32 v11, 0x3a000000, v11
    v_lshl_add_u32 v12, v4, 9, s46
    v_lshl_add_u32 v14, v4, 9, s47
    v_cvt_f32_u32 v12, v12
    v_cvt_f32_u32 v14, v14
    v_mul_f32 v12, v12, v11
    v_mul_f32 v14, v14, v11''')
    def fix():
        a(f'''v_lshlrev_b32 v15, 31, v5
        v_xor_b32 v15, {fx(-2.0**-21)}, v15
        v_mov_b32 v2, {fx(2.0**-21)}
        v_cndmask_b32 v{D+2}, v{D+2}, v2, s[48:49]
        v_cndmask_b32 v{D+4}, v{D+4}, v15, s[48:49]''')
    trig(11,(12,14),lambda s,e:64*e,amp=2.0**-20,fix=fix,dst=(P,R,Q))
    for i in range(8): a(f'v_mov_b32 v{T+i}, v{P+i}')
    a('s_cmp_lg_u32 s2, 0\ns_cbranch_scc1 pb_5')
    for i in range(4):
        a(f'v_mov_b32 v{R+i}, v{P+i}\nv_mov_b32 v{T+i}, v{Q+i}\nv_mov_b32 v{P+i}, 0\nv_mov_b32 v{Q+i}, 0\nv_mov_b32 v{R+4+i}, 0\nv_mov_b32 v{T+4+i}, 0')
    a('''pb_5:
    v_lshlrev_b32 v3, 17, v5
    v_lshl_add_u32 v3, v4, 4, v3
    s_lshl_b32 s28, s2, 12
    s_lshl_b32 s30, s3, 8
    s_add_u32 s28, s28, s30
    s_waitcnt lgkmcnt(0)
    s_barrier''')
    def srd_i(al):
        for j in range(2):
            a(f'v_xor_b32 v14, {al*64^((2*j^(al>>1))*8)}, v13')
            for pl in range(2):
                for s in range(2): a(f'ds_read_b64_tr_b16 {vr(XB[al&1]+8*pl+4*s+2*j,2)}, v14 offset:{al*4096+pl*2048+s*1024+j*256}')
    def swr_i(al):
        pack(DB[al&1],O)
        for pl in range(2):
            for pp in range(2):
                d=O+8*pl+4*pp
                a(f'v_permlane32_swap_b32 v{d}, v{d+2}\nv_permlane32_swap_b32 v{d+1}, v{d+3}')
                a(f'buffer_store_dwordx4 {vr(d,4)}, v3, s[20:23], s28 offen offset:{pl*2048+al*64+pp*32}')
    sstage(srd_i,swr_i)
```

```python
from k1 import *
def k3(a,NS=4):
    head(a,'k3_kernel')
    TL=NS*16384
    a('''s_cmp_ge_u32 s2, 256
    s_cbranch_scc1 k3_end
    s_load_dwordx2 s[4:5], s[0:1], 0
    s_load_dwordx4 s[36:39], s[0:1], 48
    s_load_dwordx2 s[6:7], s[0:1], 72
    v_lshrrev_b32 v1, 6, v0
    v_and_b32 v0, 63, v0
    v_readfirstlane_b32 s3, v1
    s_bfe_u32 s28, s2, 0x20001
    s_lshl_b32 s28, s28, 2
    s_bfe_u32 s29, s2, 0x20003
    s_add_u32 s28, s28, s29
    s_and_b32 s29, s2, 1
    s_lshl_b32 s29, s29, 3
    s_lshr_b32 s30, s2, 5
    s_add_u32 s29, s29, s30
    s_lshr_b32 s30, s3, 2
    s_and_b32 s31, s3, 3''')
    a('''v_lshrrev_b32 v4, 5, v0
    v_bfe_u32 v3, v0, 2, 2
    v_lshl_add_u32 v2, v4, 2, v3
    v_lshlrev_b32 v2, 11, v2
    v_bfe_u32 v3, v0, 4, 1
    v_lshl_add_u32 v2, v3, 6, v2
    v_and_b32 v3, 3, v0
    v_lshl_add_u32 v2, v3, 4, v2
    s_lshl_b32 s32, s29, 7
    s_lshl_b32 s33, s31, 15
    s_add_u32 s32, s32, s33
    v_add_u32 v2, s32, v2
    v_add_u32 v5, 0x3c00, v2
    v_lshlrev_b32 v6, 4, v0
    s_lshl_b32 s32, s28, 2
    s_add_u32 s32, s32, s31
    s_mul_i32 s40, s32, 224*1024
    s_mul_i32 s33, s30, 112*1024
    s_add_u32 s40, s40, s33
    s_mul_i32 s41, s30, 1792*2048
    s_lshl_b32 s42, s3, 11
    s_lshl_b32 s43, s28, 1
    s_add_u32 s33, s43, s30
    s_lshl_b32 s33, s33, 17''')
    a('''s_lshr_b32 s34, s31, 1
    s_add_u32 s43, s43, s34
    s_and_b32 s35, s31, 1
    s_lshl_b32 s35, s35, 5
    v_and_b32 v8, 31, v0
    v_add_u32 v8, s35, v8
    v_lshlrev_b32 v7, 16, v8
    v_lshl_add_u32 v7, v4, 4, v7
    s_lshl_b32 s43, s43, 11
    s_lshl_b32 s35, s29, 7
    s_add_u32 s43, s43, s35
    s_lshl_b32 s35, s30, 6
    s_add_u32 s43, s43, s35
    v_add_u32 v7, s43, v7
    s_waitcnt lgkmcnt(0)''')
    srd(a,8,6,H_OFF,2048*3584*2); srd(a,12,36,0,3584*2048); srd(a,16,6,T_OFF,4<<20); srd(a,20,4,0,4<<20); srd(a,24,38,0,4<<20)
    HF=64
    def loads(slot):
        r=[]
        r.append(f's_add_u32 m0, s42, {slot*16384}\nbuffer_load_dwordx4 v2, s[12:15], s41 offen lds')
        r.append('buffer_load_dwordx4 v5, s[12:15], s41 offen offset:1024 lds\ns_add_u32 s41, s41, 64*2048')
        for s in range(4):
            r.append(f'buffer_load_dwordx4 {vr(HF+slot*16+4*s,4)}, v6, s[8:11], s40 offen offset:{1024*s}'+('\ns_add_u32 s40, s40, 4096' if s==3 else ''))
        return r
    for st in range(NS-1):
        for x in loads(st): a(x)
        if st==0:
            a(f'''s_add_u32 m0, s42, {TL}
            buffer_load_dwordx4 v2, s[16:19], s33 offen lds
            buffer_load_dwordx4 v5, s[16:19], s33 offen offset:1024 lds
            buffer_load_dwordx4 v[56:59], v7, s[20:23], 0 offen
            buffer_load_dwordx4 v[60:63], v7, s[20:23], 0 offen offset:32''')
    trlane(a,9,0,3,512)
    a(f'''s_lshl_b32 s35, s34, 13
    s_lshl_b32 s44, s30, 8
    s_add_u32 s35, s35, s44
    s_add_u32 s35, s35, {TL}
    v_add_u32 v10, s35, v9
    s_lshl_b32 s35, s30, 13
    v_add_u32 v9, s35, v9''')
    GF=HF+NS*16+16
    WF=HF+NS*16
    a('''v_cvt_f32_u32 v11, v8
    v_mul_f32 v11, 0x3c800000, v11
    v_lshlrev_b32 v12, 1, v4
    v_cvt_f32_u32 v12, v12
    v_mul_f32 v12, v12, v11
    v_add_f32 v13, 0x3e800000, v12
    v_cmp_gt_u32 vcc, 32, v0''')
    for s in range(4):
        for j in range(2):
            for e2 in range(2):
                k=8*s+4*j+e2
                a(f'v_fmamk_f32 v14, v11, {fx(k)}, v12\nv_fmamk_f32 v15, v11, {fx(k)}, v13')
                if k==0: a('v_mul_f32 v3, 0x42000000, v11\nv_cndmask_b32 v15, v15, v3, vcc')
                a(f'v_cos_f32 v14, v14\nv_cos_f32 v15, v15\nv_cvt_pk_bf16_f32 v{GF+4*s+2*j+e2}, v14, v15')
    for i in range(32): a(f'v_mov_b32 v{16+i}, 0')
    def rd(slot,s,buf):
        return [f'ds_read_b64_tr_b16 {vr(WF+buf*8+nb*4+j*2,2)}, v9 offset:{slot*16384+(4*s+2*j)*512+nb*256}' for nb in range(2) for j in range(2)]
    a(f's_waitcnt vmcnt({6*(NS-2)+4})\ns_barrier')
    for x in rd(0,0,0): a(x)
    def stage(slot,ld,last,vm):
        L=loads((slot+NS-1)%NS) if ld else []
        for s in range(4):
            if s<3: R=rd(slot,s+1,(s+1)&1)
            elif last: R=[]
            else:
                R=rd((slot+1)%NS,0,0)
            a('s_waitcnt lgkmcnt(0)')
            if s==3 and not last: a(f's_waitcnt vmcnt({vm})\ns_barrier')
            for nb in range(2):
                for x in R[2*nb:2*nb+2]: a(x)
                acc=vr(16+16*nb,16)
                a(f'v_mfma_f32_32x32x16_bf16 {acc}, {vr(WF+(s&1)*8+nb*4,4)}, {vr(HF+slot*16+4*s,4)}, {acc}')
                if L and s<3: a(L.pop(0))
    nst=28; nloop=(nst-(NS-1))//NS; rem=nst-nloop*NS
    a(f's_mov_b32 s45, {nloop}\nk3_loop:')
    for u in range(NS): stage(u,True,False,6*(NS-2))
    a('s_sub_u32 s45, s45, 1\ns_cmp_lg_u32 s45, 0\ns_cbranch_scc1 k3_loop')
    for u in range(rem):
        left=rem-1-u
        stage(u%NS,left>=NS-1,left==0,6*max(0,min(NS-2,left-1)))
    for s in range(4):
        for j in range(2): a(f'ds_read_b64_tr_b16 {vr(HF+4*s+2*j,2)}, v10 offset:{(4*s+2*j)*512}')
    a('''s_barrier
    s_lshl_b32 s35, s3, 12
    v_add_u32 v11, s35, v6
    s_xor_b32 s35, s35, 0x4000
    v_add_u32 v12, s35, v6
    s_cmp_eq_u32 s30, 0
    s_cbranch_scc1 k3_a''')
    for i in range(4): a(f'ds_write_b128 v11, {vr(16+4*i,4)} offset:{1024*i}')
    for i in range(16): a(f'v_mov_b32 v{16+i}, v{32+i}')
    a('s_branch k3_b\nk3_a:\ns_nop 7')
    for i in range(4): a(f'ds_write_b128 v11, {vr(32+4*i,4)} offset:{1024*i}')
    a('k3_b:\ns_waitcnt lgkmcnt(0)')
    SA=HF+16
    for s in range(4): a(f'v_mfma_f32_32x32x16_bf16 {vr(SA,16)}, {vr(HF+4*s,4)}, {vr(GF+4*s,4)}, {"0" if s==0 else vr(SA,16)}')
    a('s_barrier')
    for i in range(4): a(f'ds_read_b128 {vr(32+4*i,4)}, v12 offset:{1024*i}')
    a('v_permlane32_swap_b32 v56, v58\nv_permlane32_swap_b32 v57, v59\nv_permlane32_swap_b32 v60, v62\nv_permlane32_swap_b32 v61, v63')
    for pp in range(2):
        a(f's_waitcnt lgkmcnt({2-2*pp})')
        R=range(8*pp,8*pp+8)
        for i in R: a(f'v_add_f32 v{16+i}, v{16+i}, v{32+i}')
        for i in R: a(f'v_mul_f32 v{32+i}, 0xbfb8aa3b, v{16+i}')
        for i in R: a(f'v_exp_f32 v{32+i}, v{32+i}')
        for i in R: a(f'v_add_f32 v{32+i}, 1.0, v{32+i}')
        for i in R: a(f'v_rcp_f32 v{32+i}, v{32+i}')
        for i in R: a(f'v_mul_f32 v{16+i}, v{16+i}, v{32+i}')
        for i in R: a(f'v_lshlrev_b32 v{32+i}, 16, v{56+i//2}' if i%2==0 else f'v_and_b32 v{32+i}, 0xffff0000, v{56+i//2}')
        for i in R: a(f'v_fmac_f32 v{32+i}, v{16+i}, v{SA+i}')
        d=48+4*pp
        for j in range(4): a(f'v_cvt_pk_bf16_f32 v{d+j}, v{32+8*pp+2*j}, v{33+8*pp+2*j}')
        a(f'v_permlane32_swap_b32 v{d}, v{d+2}\nv_permlane32_swap_b32 v{d+1}, v{d+3}')
        a(f'buffer_store_dwordx4 {vr(d,4)}, v7, s[24:27], 0 offen offset:{pp*32}')
    a('k3_end:\ns_endpgm')
    return GF+16, TL+16384
```

```python
import sys
from k1 import *
from k2 import k2
from k3 import k3
def build(path,**kw):
    a=Asm()
    k1(a); v2,l2=k2(a,**kw.get('k2',{})); v3,l3=k3(a,**kw.get('k3',{}))
    ref=open('recurrent_scan__spectral_gfnet__glu_gated_bilinear__prompt.s.ref').read().split('\n')
    hdr='\n'.join(ref[:11])+'\n'
    hdr+='; @launch kernel=k1_kernel grid=(256,1,1) block=(256,1,1) lds=16384\n'
    hdr+=f'; @launch kernel=k2_kernel grid=(256,1,1) block=(512,1,1) lds={l2}\n'
    hdr+=f'; @launch kernel=k3_kernel grid=(256,1,1) block=(512,1,1) lds={l3}\n'
    hdr+='.amdgcn_target "amdgcn-amd-amdhsa--gfx950"\n.text\n'
    t=hdr+a.text()+'.section .rodata,"a"\n'+desc('k1_kernel',176)+desc('k2_kernel',v2)+desc('k3_kernel',v3)
    open(path,'w').write(t); print(path,len(a.L),'lines, nops',a.nops)
if __name__=='__main__':
    build('recurrent_scan__spectral_gfnet__glu_gated_bilinear__prompt.s')
```

```python
import re
TRANS=('v_exp_f32','v_log_f32','v_rcp_f32','v_rsq_f32','v_sqrt_f32','v_sin_f32','v_cos_f32')
def regs(tok):
    tok=tok.strip().lstrip('-')
    if tok.startswith('abs('): tok=tok[4:-1]
    if tok.startswith('|'): tok=tok.strip('|')
    m=re.fullmatch(r'([vsa])\[(\d+):(\d+)\]',tok)
    if m: return {(m.group(1),i) for i in range(int(m.group(2)),int(m.group(3))+1)}
    m=re.fullmatch(r'([vsa])(\d+)',tok)
    if m: return {(m.group(1),int(m.group(2)))}
    if tok=='vcc': return {('s','vcc')}
    if tok=='m0': return {('s','m0')}
    return set()
class I:
    def __init__(s,text):
        s.text=text; t=text.split(';')[0].strip()
        s.label=t.endswith(':'); s.raw=t.startswith('.') or not t
        p=t.split(None,1); s.op=p[0] if p else ''
        ops=[]
        if len(p)>1: ops=[o.strip().split(' ')[0] for o in p[1].split(',')]
        s.ops=ops; o=s.op
        s.mfma=o.startswith('v_mfma'); s.valu=o.startswith('v_') and not s.mfma
        s.ds=o.startswith('ds_'); s.vmem=o.startswith('buffer_') or o.startswith('global_')
        s.salu=o.startswith('s_'); s.dma=s.vmem and t.endswith(' lds') or (s.vmem and ' lds ' in t)
        R=[regs(x) for x in ops]; U=lambda l:set().union(*l) if l else set()
        s.w=set(); s.r=set(); s.ab=set(); s.c=set(); s.stdata=set()
        if s.mfma:
            s.w=R[0]; s.ab=R[1]|R[2]; s.c=R[3]; s.r=s.ab|s.c; s.p8='32x32' in o
        elif s.valu:
            s.w=R[0]; s.r=U(R[1:])
            if 'permlane' in o: s.w=R[0]|R[1]; s.r=s.w
            if o.startswith(('v_fmac','v_dot2c','v_writelane')): s.r|=R[0]
            if '_co_' in o: s.w=R[0]|R[1]; s.r=U(R[2:])
        elif s.ds:
            if 'write' in o: s.r=U(R)
            else: s.w=R[0]; s.r=U(R[1:])
        elif s.vmem:
            if s.dma: s.r=U(R)|{('s','m0')}
            elif 'store' in o:
                s.r=U(R)
                if 'x4' in o or 'x3' in o: s.stdata=R[0] if o.startswith('buffer') else R[1]
            else: s.w=R[0]; s.r=U(R[1:])
        elif s.salu and ops and not o.startswith(('s_cmp','s_waitcnt','s_nop','s_cbranch','s_branch','s_setprio','s_sleep')):
            s.w=R[0]; s.r=U(R[1:])
        s.states=(int(ops[0])+1) if o=='s_nop' else (0 if (s.label or s.raw) else 1)
def need(a,b):
    n=0; V=lambda x:{r for r in x if r[0]!='s'}; S=lambda x:{r for r in x if r[0]=='s'}
    if a.valu:
        if b.mfma and V(a.w)&b.r: n=max(n,2)
        if b.valu:
            if a.op.startswith(TRANS) and a.w&b.r: n=max(n,1)
            if ('permlane' in b.op or 'dpp' in b.text or 'row_' in b.text) and V(a.w)&b.r: n=max(n,2)
            if b.op.startswith(('v_readfirstlane','v_readlane')) and a.w&b.r: n=max(n,1)
            if S(a.w)&b.r: n=max(n,2)
        if b.vmem and S(a.w)&b.r: n=max(n,5)
    if a.mfma:
        big=12 if a.p8 else 8
        if b.mfma:
            if a.w&b.ab: n=max(n,big)
            if a.w&b.c and (a.w!=b.c): n=max(n,big-2)
            if a.w&b.w and not (a.w&b.c): n=max(n,big)
        elif (b.valu or b.ds or b.vmem) and a.w&(b.r|b.w): n=max(n,big)
        if b.valu and a.c&b.w: n=max(n,7 if a.p8 else 3)
    if a.salu and ('s','m0') in a.w and b.dma: n=max(n,1)
    if a.stdata and a.stdata&b.w and not b.salu: n=max(n,2)
    return n
class Asm:
    def __init__(s): s.L=[]; s.nops=0
    def __call__(s,text):
        for t in text.split('\n'):
            t=t.strip()
            if not t: continue
            b=I(t)
            if not (b.label or b.raw):
                d=0; pad=0
                for a in reversed(s.L):
                    if d>=13: break
                    if a.op in('s_endpgm','s_branch'): break
                    pad=max(pad,need(a,b)-d); d+=a.states
                if pad>0: s.L.append(I('s_nop %d'%(pad-1))); s.nops+=pad
            s.L.append(b)
    def check_branches(s):
        lab={i.text.split(';')[0].strip()[:-1]:k for k,i in enumerate(s.L) if i.label}
        for k,i in enumerate(s.L):
            if i.op.startswith(('s_cbranch','s_branch')):
                seq=s.L[max(0,k-14):k+1]; t=lab[i.ops[0]]; nxt=s.L[t:t+16]
                for y,b in enumerate(nxt):
                    if b.label or b.raw: continue
                    d=sum(q.states for q in nxt[:y])
                    for a in reversed(seq):
                        assert need(a,b)<=d,('branch hazard',a.text,b.text)
                        d+=a.states
                    if b.op in('s_endpgm','s_branch'): break
    def text(s):
        s.check_branches()
        return '\n'.join((i.text if (i.label or i.raw) else '    '+i.text) for i in s.L)+'\n'
def vr(b,n=1): return 'v%d'%b if n==1 else 'v[%d:%d]'%(b,b+n-1)
def sr(b,n=1): return 's%d'%b if n==1 else 's[%d:%d]'%(b,b+n-1)
import struct
def fx(x): return '0x%08x'%struct.unpack('<I',struct.pack('<f',x))[0]
import subprocess
def sizes(a):
    open('sz.s','w').write('.amdgcn_target "amdgcn-amd-amdhsa--gfx950"\n.text\n'+'\n'.join(i.text for i in a.L if not i.raw)+'\n')
    o=subprocess.run(['llvm-mc','-triple=amdgcn-amd-amdhsa','-mcpu=gfx950','-show-encoding','sz.s'],capture_output=True,text=True)
    assert o.returncode==0,o.stderr[:2000]
    enc=[(l.split(';')[0].split()[0],l.split('encoding: [')[1].count(',')+1) for l in o.stdout.split('\n') if 'encoding: [' in l]
    ins=[i for i in a.L if not(i.raw or i.label)]
    assert len(enc)==len(ins),(len(enc),len(ins))
    for i,(n,z) in zip(ins,enc): i.size=z; i.e32=n.endswith('_e32')
def align8(a):
    sizes(a); out=[]; off=0; run=[]; np_=0; pr=0
    for i in a.L:
        if i.raw:
            if 'p2align' in i.text: off=0; run=[]
            out.append(i); continue
        if (i.label and 'loop' in i.text or i.label and 'row' in i.text or (not i.label and i.size==8)) and off%8:
            c=[r for r in run if r.e32 and r.size==4 and not r.op.startswith(('v_readfirstlane','v_permlane','v_fmam','v_fmac')) ]
            if c: r=c[-1]; r.text=r.text.replace(r.op,r.op+'_e64',1); r.size=8; pr+=1
            else:
                n=I('s_nop 0'); n.size=4; n.e32=False; np_+=1
                k=len(out)
                while k>0 and out[k-1].op in('s_waitcnt','s_barrier'): k-=1
                out.insert(k,n)
            off+=4
        if i.label: out.append(i); continue
        if i.size==8: run=[]
        else: run.append(i)
        off+=i.size; out.append(i)
    a.L=out; return np_,pr
```

```python
from asmlib import *
XN_OFF=0; A0_OFF=4<<20; H_OFF=8<<20; T_OFF=24<<20
def srd(a,d,b,off,size):
    if off: a(f's_add_u32 s{d}, s{b}, {off}\ns_addc_u32 s{d+1}, s{b+1}, 0')
    else: a(f's_mov_b32 s{d}, s{b}\ns_mov_b32 s{d+1}, s{b+1}')
    a(f's_mov_b32 s{d+2}, {size}\ns_mov_b32 s{d+3}, 0x20000')
class St:
    on=False; n=0
def stamp(a,first=False):
    if not St.on: return
    if first: St.n=0; a('s_memtime s[90:91]')
    a(f's_memrealtime s[{60+2*St.n}:{61+2*St.n}]'); St.n+=1
    if first: a('s_load_dwordx2 s[94:95], s[0:1], 72')
    a('s_waitcnt lgkmcnt(0)')
def stamp_end(a,ki,n0=None,cyc=False):
    if not St.on: return
    a('s_waitcnt vmcnt(0)'); stamp(a); a('s_memtime s[92:93]\ns_waitcnt lgkmcnt(0)')
    srd(a,8,94,(64<<20)+ki*16384,16384)
    a('s_lshl_b32 s12, s2, 6\nv_mov_b32 v1, 0')
    for j in range(St.n): a(f'v_writelane_b32 v1, s{60+2*j}, {j}')
    a(f'v_writelane_b32 v1, s90, 13\nv_writelane_b32 v1, s92, 14\nv_writelane_b32 v1, {St.n}, 15')
    a('v_writelane_b32 v1, s88, 12' if cyc else 'v_writelane_b32 v1, 0, 12')
    a('v_lshlrev_b32 v2, 2, v0\nv_cmp_gt_u32 vcc, 16, v0\ns_cmp_eq_u32 s3, 0\ns_cselect_b64 vcc, vcc, 0\nv_mov_b32 v3, 0x100000\nv_cndmask_b32 v2, v3, v2, vcc\nbuffer_store_dword v1, v2, s[8:11], s12 offen')
    if n0 is not None: St.n=n0
def head(a,name):
    a(f'.globl {name}\n.p2align 8\n.type {name},@function\n{name}:')
def desc(name,vg,acc=None):
    acc=acc or (vg+3)//4*4
    return f'''.p2align 6
.amdhsa_kernel {name}
  .amdhsa_next_free_vgpr {vg}
  .amdhsa_next_free_sgpr 96
  .amdhsa_accum_offset {acc}
  .amdhsa_group_segment_fixed_size 0
  .amdhsa_kernarg_size 80
  .amdhsa_user_sgpr_count 2
  .amdhsa_user_sgpr_kernarg_segment_ptr 1
  .amdhsa_system_sgpr_workgroup_id_x 1
.end_amdhsa_kernel
'''
def trlane(a,d,l,t,hmul):
    a(f'''v_lshrrev_b32 v{d}, 5, v{l}
    v_mul_u32_u24 v{d}, {hmul}, v{d}
    v_bfe_u32 v{t}, v{l}, 2, 2
    v_lshl_add_u32 v{d}, v{t}, 6, v{d}
    v_bfe_u32 v{t}, v{l}, 4, 1
    v_lshl_add_u32 v{d}, v{t}, 5, v{d}
    v_and_b32 v{t}, 3, v{l}
    v_lshl_add_u32 v{d}, v{t}, 3, v{d}''')
def k1(a,pf=True,sc=''):
    head(a,'k1_kernel')
    a('s_cmp_ge_u32 s2, 256\ns_cbranch_scc1 k1_end')
    stamp(a,True)
    a('''s_load_dwordx2 s[4:5], s[0:1], 0
    s_load_dwordx2 s[6:7], s[0:1], 72
    s_load_dwordx4 s[36:39], s[0:1], 8
    s_load_dwordx4 s[40:43], s[0:1], 32
    v_lshrrev_b32 v1, 6, v0
    v_and_b32 v0, 63, v0
    v_readfirstlane_b32 s3, v1
    s_and_b32 s20, s2, 31
    s_lshr_b32 s21, s2, 5''')
    for tg in range(8):
        a(f's_add_u32 s{24+tg}, s21, {tg}\ns_and_b32 s{24+tg}, s{24+tg}, 7\ns_lshl_b32 s{24+tg}, s{24+tg}, 8')
    a('''v_bfe_u32 v3, v0, 2, 2
    v_lshl_add_u32 v2, v1, 4, v3
    v_lshlrev_b32 v2, 16, v2
    s_lshl_b32 s22, s20, 11
    v_add_u32 v2, s22, v2
    v_lshrrev_b32 v161, 4, v0
    v_lshl_add_u32 v2, v161, 6, v2
    v_and_b32 v160, 3, v0
    v_lshl_add_u32 v4, v160, 4, v2
    v_add_u32 v5, 0x40000, v4
    v_add_u32 v6, 0x80000, v4
    v_add_u32 v7, 0xc0000, v4
    v_lshlrev_b32 v173, 4, v0
    s_waitcnt lgkmcnt(0)''')
    srd(a,8,4,0,4<<20)
    for t in range(32):
        a(f'buffer_load_dwordx4 {vr(16+4*t,4)}, v{4+(t&3)}, s[8:11], s{24+(t>>2)} offen')
    srd(a,12,6,XN_OFF,4<<20); srd(a,16,6,A0_OFF,4<<20)
    NPF=0
    if pf:
        srd(a,44,36,0,2048*1026); srd(a,48,38,0,2048*1026); srd(a,52,40,0,128*7168); srd(a,56,42,0,128*7168)
        a('s_lshl_b32 s25, s2, 2\ns_add_u32 s25, s25, s3\ns_lshl_b32 s26, s25, 11\ns_lshl_b32 s25, s25, 10')
        for d in (52,56): a(f'buffer_load_dwordx4 v[208:211], v173, {sr(d,4)}, s25 offen')
        for d in (44,48):
            for o in (0,1024): a(f'buffer_load_dwordx4 v[208:211], v173, {sr(d,4)}, s26 offen offset:{o}')
        NPF=6
    for i in range(4): a(f'v_mov_b32 v{12+i}, 0x3f803f80')
    a('''s_and_b32 s23, s3, 1
    s_lshl_b32 s23, s23, 5
    v_and_b32 v174, 31, v0
    v_add_u32 v162, s23, v174
    v_lshrrev_b32 v163, 1, v162
    v_and_b32 v164, 1, v162
    v_cmp_eq_u32 vcc, 1, v162
    v_cndmask_b32 v163, v163, 32, vcc
    v_cndmask_b32 v164, v164, 0, vcc
    v_cvt_f32_u32 v163, v163
    v_cvt_f32_u32 v164, v164
    v_mul_f32 v163, 0x3c800000, v163
    v_mul_f32 v164, 0x3e800000, v164
    v_lshrrev_b32 v165, 5, v0
    v_lshlrev_b32 v166, 3, v165
    v_cvt_f32_u32 v166, v166
    v_fma_f32 v164, v166, v163, v164''')
    for s in range(4):
        for e in range(0,8,2):
            a(f'''v_fmamk_f32 v166, v163, {fx(16*s+e)}, v164
            v_fmamk_f32 v167, v163, {fx(16*s+e+1)}, v164
            v_cos_f32 v166, v166
            v_cos_f32 v167, v167
            v_cvt_pk_bf16_f32 v{144+4*s+e//2}, v166, v167''')
    a('''s_lshl_b32 s34, s20, 17
    s_lshl_b32 s32, s21, 13
    s_add_u32 s34, s34, s32
    s_lshr_b32 s33, s3, 1
    s_lshl_b32 s32, s33, 16
    s_add_u32 s34, s34, s32
    s_lshl_b32 s32, s23, 5
    s_add_u32 s34, s34, s32
    s_add_u32 s35, s34, 4096
    s_lshl_b32 s32, s3, 12
    v_add_u32 v168, s32, v173
    v_lshlrev_b32 v169, 10, v3
    v_lshl_add_u32 v169, v160, 6, v169
    v_lshl_add_u32 v169, v161, 4, v169
    v_add_u32 v169, s32, v169
    v_mul_u32_u24 v172, 80, v3
    s_mul_i32 s32, s3, 4608
    s_add_u32 s32, s32, 16384
    v_mul_u32_u24 v175, 144, v174
    v_lshl_add_u32 v175, v165, 3, v175
    v_add_u32 v175, s32, v175
    v_lshrrev_b32 v166, 3, v0
    v_and_b32 v167, 7, v0
    v_mul_u32_u24 v162, 144, v166
    v_lshl_add_u32 v162, v167, 4, v162
    v_add_u32 v162, s32, v162
    v_lshlrev_b32 v171, 16, v166
    v_lshl_add_u32 v171, v167, 4, v171
    s_lshl_b32 s22, s20, 11
    s_lshl_b32 s32, s21, 8
    s_add_u32 s22, s22, s32
    s_lshl_b32 s32, s33, 7
    s_add_u32 s22, s22, s32
    s_lshl_b32 s32, s23, 16
    s_add_u32 s22, s22, s32
    v_cmp_eq_u32 s[24:25], 1, v160
    v_cmp_eq_u32 s[26:27], 2, v160
    v_cmp_eq_u32 s[28:29], 3, v160''')
    trlane(a,170,0,166,2048)
    a('s_lshl_b32 s32, s33, 9\nv_add_u32 v170, s32, v170')
    stamp(a)
    SU,GR=176,192
    for t in range(32):
        a(f's_waitcnt vmcnt({31+NPF-t})')
        if t in(0,31): stamp(a)
        d=vr(16+4*t,4); u=t&3
        a(f'v_mfma_f32_16x16x32_bf16 {vr(SU+4*u,4)}, v[12:15], {d}, {"0" if t<4 else vr(SU+4*u,4)}')
        a(f'v_mfma_f32_16x16x32_bf16 {vr(GR+4*u,4)}, {d}, {d}, {"0" if t<4 else vr(GR+4*u,4)}')
    def each(f):
        for u in range(4): a(f.replace('S1',f'v{SU+4*u+1}').replace('G1',f'v{GR+4*u+1}').replace('G2',f'v{GR+4*u+2}').replace('G3',f'v{GR+4*u+3}').replace('S',f'v{SU+4*u}').replace('G',f'v{GR+4*u}'))
    for f in ['v_cndmask_b32 G, G, G1, s[24:25]','v_cndmask_b32 G, G, G2, s[26:27]','v_cndmask_b32 G, G, G3, s[28:29]',
      'v_add_f32_dpp G, G, G quad_perm:[1,0,3,2] row_mask:0xf bank_mask:0xf','v_add_f32_dpp G, G, G quad_perm:[2,3,0,1] row_mask:0xf bank_mask:0xf',
      'ds_bpermute_b32 G, v172, G',
      'v_add_f32_dpp S, S, S quad_perm:[1,0,3,2] row_mask:0xf bank_mask:0xf','v_add_f32_dpp S, S, S quad_perm:[2,3,0,1] row_mask:0xf bank_mask:0xf',
      'v_mul_f32 S, 0x3a800000, S','v_mul_f32 S1, S, S','v_cvt_pk_bf16_f32 S, S, S','v_and_b32 S, 0xffff0000, S',None,
      'v_mul_f32 G, 0x3a800000, G','v_sub_f32 G, G, S1','v_max_f32 G, 0, G','v_cvt_pk_bf16_f32 G, G, G','v_and_b32 G, 0xffff0000, G',
      'v_add_f32 G, 0x3727c5ac, G','v_cvt_pk_bf16_f32 G, G, G','v_and_b32 G, 0xffff0000, G','v_sqrt_f32 G, G',
      'v_cvt_pk_bf16_f32 G, G, G','v_and_b32 G, 0xffff0000, G','v_rcp_f32 G, G']:
        if f: each(f)
        else: a('s_waitcnt lgkmcnt(0)')
    for u in range(4):
        for j in range(4):
            r=16+4*u+j
            a(f'''v_lshlrev_b32 v5, 16, v{r}
            v_and_b32 v6, 0xffff0000, v{r}
            v_sub_f32 v5, v5, v{SU+4*u}
            v_sub_f32 v6, v6, v{SU+4*u}
            v_cvt_pk_bf16_f32 v7, v5, v6
            v_lshlrev_b32 v5, 16, v7
            v_and_b32 v6, 0xffff0000, v7
            v_mul_f32 v5, v5, v{GR+4*u}
            v_mul_f32 v6, v6, v{GR+4*u}
            v_cvt_pk_bf16_f32 v{r}, v5, v6''')
        a(f'ds_write_b128 v168, {vr(16+4*u,4)} offset:{u*1024}')
    for t in range(4): a(f'ds_read_b128 {vr(112+4*t,4)}, v169 offset:{t*256}')
    a('s_waitcnt lgkmcnt(0)\ns_barrier'); stamp(a)
    for nb in range(2):
        for s in range(4):
            for j in range(2):
                a(f'ds_read_b64_tr_b16 {vr(32+nb*16+s*4+j*2,2)}, v170 offset:{s*4096+j*1024+nb*256}')
    for t in range(4): a(f'buffer_store_dwordx4 {vr(112+4*t,4)}, v173, s[12:15], s{34+(t>>1)} offen offset:{(t&1)*2048}{sc}')
    for nb in range(2):
        a(f's_waitcnt lgkmcnt({8-8*nb})')
        for s in range(4):
            acc=vr(64+16*nb,16)
            a(f'v_mfma_f32_32x32x16_bf16 {acc}, {vr(32+nb*16+s*4,4)}, {vr(144+4*s,4)}, {"0" if s==0 else acc}')
    for nb in range(2):
        for g in range(4):
            b=64+16*nb+4*g; d=96+8*nb+2*g
            for j in range(2): a(f'v_cvt_pk_bf16_f32 v{d+j}, v{b+2*j}, v{b+2*j+1}')
            a(f'ds_write_b64 v175, {vr(d,2)} offset:{nb*64+g*16}')
    for z in range(4): a(f'ds_read_b128 {vr(16+4*z,4)}, v162 offset:{z*8*144}')
    for z in range(4):
        a(f's_waitcnt lgkmcnt({3-z})\nbuffer_store_dwordx4 {vr(16+4*z,4)}, v171, s[16:19], s22 offen{sc}\ns_add_u32 s22, s22, 0x80000')
    stamp(a); stamp_end(a,0)
    a('k1_end:\ns_endpgm')
```

```python
from k1 import *
M32='v_mfma_f32_32x32x16_bf16'
def k2(a,NS=4,fft=True,pf=True,sc='',exp=''):
    head(a,'k2_kernel')
    a('''s_cmp_ge_u32 s2, 256
    s_cbranch_scc1 k2_end''')
    stamp(a,True)
    a('''    s_load_dwordx4 s[36:39], s[0:1], 32
    s_load_dwordx4 s[40:43], s[0:1], 8
    s_load_dwordx2 s[48:49], s[0:1], 48
    s_load_dwordx2 s[6:7], s[0:1], 72
    v_lshrrev_b32 v1, 6, v0
    v_and_b32 v0, 63, v0
    v_readfirstlane_b32 s3, v1
    s_cmp_lt_u32 s2, 32
    s_cbranch_scc1 k2_fft
    s_lshr_b32 s30, s2, 3
    s_sub_u32 s30, s30, 4
    s_and_b32 s28, s2, 1
    s_lshl_b32 s28, s28, 2
    s_and_b32 s31, s30, 3
    s_add_u32 s28, s28, s31
    s_bfe_u32 s29, s2, 0x20001
    s_mul_i32 s29, s29, 7
    s_lshr_b32 s31, s30, 2
    s_add_u32 s29, s29, s31
    v_lshlrev_b32 v2, 4, v0
    v_bfe_u32 v4, v0, 2, 2
    v_mul_u32_u24 v3, 7168, v4
    v_lshrrev_b32 v4, 4, v0
    v_lshl_add_u32 v3, v4, 6, v3
    v_and_b32 v4, 3, v0
    s_and_b32 s32, s3, 2
    v_xor_b32 v4, s32, v4
    v_lshl_add_u32 v3, v4, 4, v3
    s_lshl_b32 s32, s28, 3
    s_add_u32 s32, s32, s3
    s_lshl_b32 s32, s32, 16
    s_mul_i32 s33, s3, 4*7168
    s_lshl_b32 s34, s29, 8
    s_add_u32 s33, s33, s34
    s_lshl_b32 s34, s3, 11
    s_lshl_b32 s35, s3, 10
    s_sub_u32 s34, s34, 0x400
    s_waitcnt lgkmcnt(0)''')
    srd(a,8,6,XN_OFF,4<<20); srd(a,12,36,0,7168*1024); srd(a,16,38,0,7168*1024); srd(a,20,6,H_OFF,2048*3584*2)
    def loads(slot):
        o=slot*32768
        return [f's_add_u32 m0, s35, {o+16384}\nbuffer_load_dwordx4 v3, s[12:15], s33 offen lds',
                f's_add_u32 m0, s35, {o+24576}\nbuffer_load_dwordx4 v3, s[16:19], s33 offen lds\ns_add_u32 s33, s33, 32*7168',
                f's_add_u32 m0, s34, {o+1024}\nbuffer_load_dwordx4 v2, s[8:11], s32 offen lds',
                'buffer_load_dwordx4 v2, s[8:11], s32 offen offset:1024 lds\ns_add_u32 s32, s32, 2048']
    for st in range(NS):
        for x in loads(st): a(x)
    NPF=0
    if pf:
        a('s_sub_u32 s46, s2, 32\ns_lshl_b32 s46, s46, 3\ns_add_u32 s46, s46, s3\ns_mul_i32 s47, s46, 3584\ns_add_u32 s47, s47, 128*7168')
        for d in (12,16):
            for o in (0,1024,2048,2560): a(f'buffer_load_dwordx4 v[116:119], v2, {sr(d,4)}, s47 offen offset:{o}')
        NPF=8
        a('s_lshl_b32 s46, s46, 12'); srd(a,24,48,0,3584*2048)
    a('''s_and_b32 s30, s3, 3
    s_lshr_b32 s31, s3, 2
    v_lshrrev_b32 v4, 4, v0
    v_lshlrev_b32 v8, 11, v4
    v_and_b32 v4, 1, v4
    v_lshl_add_u32 v8, v4, 5, v8
    v_bfe_u32 v4, v0, 2, 2
    v_lshl_add_u32 v8, v4, 6, v8
    v_and_b32 v4, 3, v0
    v_lshl_add_u32 v8, v4, 3, v8
    s_lshl_b32 s44, s30, 8
    s_add_u32 s44, s44, 16384
    v_add_u32 v8, s44, v8
    s_lshl_b32 s44, s31, 13
    v_add_u32 v5, s44, v2
    v_add_u32 v6, 0x10000, v5
    v_add_u32 v7, 0x20000, v5
    v_add_u32 v9, 0x10000, v8
    v_add_u32 v10, 0x20000, v8
    v_xor_b32 v11, 32, v8
    v_xor_b32 v12, 32, v9
    v_xor_b32 v13, 32, v10''')
    ACC=128; XF=16; WFR=48
    for i in range(128): a(f'v_accvgpr_write_b32 a{i}, 0' if 'agpr' in exp else f'v_mov_b32 v{ACC+i}, 0')
    def rdx(slot,hf):
        return [f'ds_read_b128 {vr(XF+16*hf+4*i,4)}, v{5+slot//2} offset:{(slot&1)*32768+(4*hf+i)*1024}' for i in range(4)]
    def rdw(slot,buf):
        return [f'ds_read_b64_tr_b16 {vr(WFR+16*buf+8*mat+4*t+2*j,2)}, v{8+3*t+slot//2} offset:{(slot&1)*32768+mat*8192+j*1024}' for mat in range(2) for t in range(2) for j in range(2)]
    def mm(hf,buf,F):
        n=0
        for i0 in range(4):
            for c0 in range(4):
                i,c=i0,c0
                if 'snake' in exp and i0&1: c=3-c0
                if 'swap' in exp: i,c=c,i
                acc=vr(ACC+(4*hf+i)*16+4*c,4)
                if 'agpr' in exp: acc='a[%d:%d]'%((4*hf+i)*16+4*c,(4*hf+i)*16+4*c+3)
                a(f'v_mfma_f32_16x16x32_bf16 {acc}, {vr(WFR+16*buf+4*c,4)}, {vr(XF+16*hf+4*i,4)}, {acc}')
                if n in F: a(F[n])
                n+=1
    stamp(a); a(f's_waitcnt vmcnt({4*(NS-1)+NPF})\ns_barrier'); stamp(a)
    for x in rdw(0,0)+rdx(0,0): a(x)
    def stage(st,ld,last,vm,extra=[]):
        slot=st%NS; buf=st&1
        F=dict(enumerate(rdx(slot,1))) if ('noread' not in exp or st==0) else {}
        if 'nodma' in exp: ld=False; vm=63
        for i,x in enumerate(loads((slot-1)%NS) if ld else extra):
            y=x.split('\n')
            if y[0].startswith('s_add_u32 m0'): F[4+3*i]=y[0]; y=y[1:]
            F[5+3*i]='\n'.join(y)
        a('s_waitcnt lgkmcnt(0)')
        mm(0,buf,F)
        a('s_waitcnt lgkmcnt(0)' if last else f's_waitcnt vmcnt({vm}) lgkmcnt(0)\ns_barrier')
        mm(1,buf,{} if last else dict(enumerate(rdw((slot+1)%NS,buf^1)+rdx((slot+1)%NS,0))))
    nst=32; U=NS if NS%2==0 else 2*NS
    pre=NS-1; nloop=(nst-NS+1-pre)//U
    for st in range(pre): stage(st,st>0,False,4*(NS-2)+NPF)
    if St.on: a('s_memtime s[90:91]'); stamp(a)
    a(f's_mov_b32 s45, {nloop}\nk2_loop:')
    for u in range(U): stage(pre+u,True,False,4*(NS-2))
    a('s_sub_u32 s45, s45, 1\ns_cmp_lg_u32 s45, 0\ns_cbranch_scc1 k2_loop')
    if St.on: a('s_memtime s[88:89]'); stamp(a); a('s_sub_u32 s88, s88, s90')
    for st in range(pre+nloop*U,nst):
        left=nst-1-st
        ex=[f'buffer_load_dwordx4 v[116:119], v2, s[24:27], s46 offen offset:{1024*i}' for i in range(4)] if (pf and left==1) else []
        stage(st,left>=NS-1,left==0,4*max(0,min(NS-2,left-1))+len(ex),ex)
    stamp(a)
    a('''s_lshl_b32 s32, s28, 3
    s_lshl_b32 s33, s31, 2
    s_add_u32 s32, s32, s33
    s_mul_i32 s32, s32, 112
    s_lshl_b32 s33, s29, 2
    s_add_u32 s32, s32, s33
    s_add_u32 s32, s32, s30
    s_lshl_b32 s32, s32, 11''')
    for pt in range(8):
        g=ACC+pt*16
        if 'agpr' in exp:
            g=16
            for i in range(16): a(f'v_accvgpr_read_b32 v{16+i}, a{pt*16+i}')
        for i in range(8): a(f'v_mul_f32 v{g+i}, v{g+i}, v{g+8+i}')
        d=80+pt*4
        for j in range(4): a(f'v_cvt_pk_bf16_f32 v{d+j}, v{g+2*j}, v{g+2*j+1}')
        a(f'buffer_store_dwordx4 {vr(d,4)}, v2, s[20:23], s32 offen offset:{1024*(pt&1)}{sc}')
        if pt&1: a('s_add_u32 s32, s32, 224*1024')
    stamp(a); stamp_end(a,1,1,True)
    a('s_endpgm\nk2_fft:')
    if fft: phaseB(a)
    a('k2_end:\ns_endpgm')
    return 256, 163840
def cmm(a,dre,dim,xre,xim,P,Q,R,T,dataA=True):
    def one(d,x,c,first):
        o=(vr(x,4),vr(c,4)) if dataA else (vr(c,4),vr(x,4))
        a(f'{M32} {vr(d,16)}, {o[0]}, {o[1]}, {"0" if first else vr(d,16)}')
    for s in range(2): one(dre,xre+4*s,P+4*s,s==0)
    for s in range(2): one(dre,xim+4*s,Q+4*s,False)
    for s in range(2): one(dim,xre+4*s,R+4*s,s==0)
    for s in range(2): one(dim,xim+4*s,T+4*s,False)
def phaseB(a):
    P,Q,R,T=16,24,32,40; C,SP,SN=48,56,64; TC,TS=72,88; X=104; D=120; WR,WI=152,168; WX=184; X2=188; D2=204
    a('s_waitcnt lgkmcnt(0)')
    srd(a,8,6,A0_OFF,4<<20); srd(a,12,40,0,2048*1026); srd(a,16,42,0,2048*1026); srd(a,20,6,T_OFF,4<<20)
    a('''v_lshrrev_b32 v2, 2, v0
    v_lshlrev_b32 v2, 11, v2
    v_and_b32 v3, 3, v0
    v_lshl_add_u32 v2, v3, 4, v2
    s_lshl_b32 s28, s2, 17
    s_lshl_b32 s29, s3, 8
    s_add_u32 s28, s28, s29
    s_lshl_b32 s29, s3, 14''')
    for al in range(4):
        for pl in range(2):
            for u in range(2):
                a(f's_add_u32 m0, s29, {al*4096+pl*2048+u*1024}\ns_add_u32 s30, s28, {pl*65536+u*32768+al*64}\nbuffer_load_dwordx4 v2, s[8:11], s30 offen lds')
    a('''v_lshrrev_b32 v4, 5, v0
    v_and_b32 v5, 31, v0
    v_lshlrev_b32 v6, 1, v5
    v_lshl_add_u32 v6, v4, 8, v6
    v_sub_u32 v7, 320, v6
    s_lshl_b32 s50, s3, 12
    s_add_u32 s50, s50, 131072
    s_and_b32 s51, s2, 1
    s_lshl_b32 s51, s51, 1
    s_sub_u32 s52, s50, s51
    v_add_u32 v7, s52, v7
    s_add_u32 s52, s52, 2048
    v_add_u32 v6, s52, v6
    v_lshlrev_b32 v8, 4, v0
    v_add_u32 v8, s51, v8
    v_and_b32 v9, 2, v0
    v_lshlrev_b32 v9, 9, v9
    v_and_b32 v10, 1, v0
    v_cmp_eq_u32 s[54:55], 1, v10
    s_mov_b64 s[56:57], 1
    s_lshl_b32 s31, s3, 8
    s_add_u32 s31, s31, s2
    s_mov_b32 s32, 4
    s_cmp_lg_u32 s2, 0
    s_cbranch_scc1 pb_0
    s_add_u32 s31, s31, 32
    s_cmp_lt_u32 s3, 4
    s_cbranch_scc1 pb_0
    s_sub_u32 s31, s31, 1056
    s_cmp_lg_u32 s3, 4
    s_cbranch_scc1 pb_0
    s_mov_b32 s32, 5
    pb_0:''')
    def wload():
        a('''s_sub_u32 s34, 2048, s31
        s_and_b32 s34, s34, 2047
        s_mul_i32 s33, s31, 1026
        s_mul_i32 s34, s34, 1026''')
        for i,(row,d) in enumerate(((34,12),(34,16),(33,12),(33,16))):
            a(f's_add_u32 m0, s50, {1024*i}\nbuffer_load_dwordx4 v8, {sr(d,4)}, s{row} offen lds')
        a(f'''v_add_u32 v10, s33, v9
        v_add_u32 v{WX+2}, s34, v9
        v_cndmask_b32 v10, v10, v{WX+2}, s[54:55]
        buffer_load_short_d16_hi v{WX}, v10, s[12:15], 0 offen
        buffer_load_short_d16_hi v{WX+1}, v10, s[16:19], 0 offen''')
    def wread():
        for r in range(16):
            for w,pl in ((WR,0),(WI,1)):
                if r<8: a(f'ds_read_u16_d16_hi v{w+r}, v6 offset:{pl*1024+(r&3)*64+(r>>2)*512}')
                else: a(f'ds_read_u16_d16_hi v{w+r}, v7 offset:{pl*1024+(3-(r&3))*64+(3-(r>>2))*512}')
    for i in range(36): a(f'v_mov_b32 v{WR+i}, 0')
    wload()
    def trig(step,base,kf,amp=None,fix=None,dst=(C,SP,SN)):
        for s in range(2):
            for e in range(0,8,2):
                b=base[s] if isinstance(base,tuple) else base
                a(f'v_fmamk_f32 v{D}, v{step}, {fx(kf(s,e))}, v{b}\nv_fmamk_f32 v{D+1}, v{step}, {fx(kf(s,e+1))}, v{b}')
                a(f'v_cos_f32 v{D+2}, v{D}\nv_cos_f32 v{D+3}, v{D+1}\nv_sin_f32 v{D+4}, v{D}\nv_sin_f32 v{D+5}, v{D+1}')
                if amp:
                    for i in range(2,6): a(f'v_mul_f32 v{D+i}, {fx(amp)}, v{D+i}')
                if fix and s==1 and e==0: fix()
                i=4*s+e//2
                a(f'v_cvt_pk_bf16_f32 v{dst[0]+i}, v{D+2}, v{D+3}\nv_cvt_pk_bf16_f32 v{dst[1]+i}, v{D+4}, v{D+5}\nv_xor_b32 v{dst[2]+i}, 0x80008000, v{dst[1]+i}')
    a('''v_lshlrev_b32 v11, 6, v5
    v_add_u32 v11, s2, v11
    s_cmp_lg_u32 s2, 0
    s_cbranch_scc1 pb_1
    v_add_u32 v12, 32, v11
    v_subrev_u32 v11, 1024, v11
    v_cmp_gt_u32 vcc, 16, v5
    v_cndmask_b32 v11, v11, v12, vcc
    pb_1:
    v_cvt_f32_u32 v11, v11
    v_mul_f32 v11, 0x3a000000, v11
    v_lshlrev_b32 v12, 3, v4
    v_cvt_f32_u32 v12, v12
    v_mul_f32 v12, v12, v11''')
    trig(11,12,lambda s,e:16*s+e,dst=(P,Q,R))
    for i in range(8): a(f'v_mov_b32 v{T+i}, v{P+i}')
    a('s_cmp_lg_u32 s2, 0\ns_cbranch_scc1 pb_2\nv_cmp_gt_u32 vcc, 16, v5\nv_cmp_eq_u32 s[46:47], 16, v5\nv_mov_b32 v13, 0xbf803f80')
    for i in range(8):
        a(f'''v_cndmask_b32 v{Q+i}, 0, v{P+i}, vcc
        v_cndmask_b32 v{T+i}, 0, v{R+i}, vcc
        v_cndmask_b32 v{P+i}, v{P+i}, 0, vcc
        v_cndmask_b32 v{R+i}, v{R+i}, 0, vcc
        v_cndmask_b32 v{R+i}, v{R+i}, v13, s[46:47]''')
    a('pb_2:')
    a('''v_cvt_f32_u32 v11, v5
    v_mul_f32 v11, 0x3d000000, v11
    v_lshlrev_b32 v12, 2, v4
    v_cvt_f32_u32 v12, v12
    v_mul_f32 v12, v12, v11''')
    trig(11,12,lambda s,e:16*s+(e&3)+8*(e>>2))
    a('v_mul_f32 v11, 0x3d000000, v11\nv_mul_f32 v12, 0x3d000000, v12')
    for r in range(16):
        a(f'v_fmamk_f32 v{D}, v11, {fx((r&3)+8*(r>>2))}, v12\nv_cos_f32 v{TC+r}, v{D}\nv_sin_f32 v{TS+r}, v{D}')
    trlane(a,2,0,14,512)
    a('''v_add_u32 v2, s29, v2
    s_lshl_b32 s30, s3, 4
    s_and_b32 s30, s30, 0x30
    s_or_b32 s35, s30, s29
    v_lshlrev_b32 v3, 6, v5
    v_bfe_u32 v14, v5, 1, 3
    v_xor_b32 v14, v14, v4
    v_lshl_add_u32 v3, v14, 3, v3
    v_and_b32 v12, 0xff, v3
    v_xor_b32 v3, s35, v3
    v_lshl_add_u32 v12, v5, 12, v12
    s_lshl_b32 s44, s3, 8
    s_or_b32 s44, s44, s30
    v_xor_b32 v12, s44, v12
    v_bfe_u32 v14, v0, 3, 1
    v_lshl_add_u32 v15, v4, 2, v14
    v_lshlrev_b32 v15, 3, v15
    v_xor_b32 v13, v2, v15
    v_xor_b32 v13, s30, v13
    v_lshl_add_u32 v15, v4, 1, v14
    v_lshlrev_b32 v15, 3, v15
    v_and_b32 v11, 0xff, v2
    v_xor_b32 v11, v11, v15
    v_bfe_u32 v14, v0, 2, 2
    v_lshl_add_u32 v14, v4, 2, v14
    v_lshl_add_u32 v11, v14, 12, v11
    v_xor_b32 v11, s44, v11''')
    def pack(d,x):
        for i in range(16): a(f'v_cvt_pk_bf16_f32 v{x+i}, v{d+2*i}, v{d+2*i+1}')
    XB=(X,X2); DB=(D,D2); O=236
    def srd_f(al):
        a(f's_waitcnt vmcnt({6+4*(3-al)})')
        for pl in range(2):
            for s in range(2):
                for j in range(2): a(f'ds_read_b64_tr_b16 {vr(XB[al&1]+8*pl+4*s+2*j,2)}, v2 offset:{al*4096+pl*2048+s*1024+j*256}')
    def swr_f(al):
        pack(DB[al&1],O)
        for g in range(4):
            a(f'v_xor_b32 v14, {al*64^((2*g^(al>>1))*8)}, v3')
            for pl in range(2): a(f'ds_write_b64 v14, {vr(O+8*pl+2*g,2)} offset:{al*4096+pl*2048}')
    def sstage(rdf,wrf):
        rdf(0)
        for al in range(4):
            a('s_waitcnt lgkmcnt(0)')
            if al<3: rdf(al+1)
            cmm(a,DB[al&1],DB[al&1]+16,XB[al&1],XB[al&1]+8,P,Q,R,T)
            if al>0: wrf(al-1)
        wrf(3)
    stamp(a); sstage(srd_f,swr_f); stamp(a)
    a('s_mov_b32 s45, 0\ns_waitcnt lgkmcnt(0)\ns_barrier\npb_row:')
    a('''s_and_b32 s46, s45, 3
    s_lshr_b32 s47, s46, 1
    s_lshl_b32 s47, s47, 3
    s_lshl_b32 s46, s46, 6
    s_or_b32 s46, s46, s47
    v_xor_b32 v15, s46, v11''')
    for s in range(2):
        for j in range(2):
            a(f'v_xor_b32 v14, {s*65536+j*32768+j*32}, v15')
            for pl in range(2): a(f'ds_read_b64_tr_b16 {vr(X+8*pl+4*s+2*j,2)}, v14 offset:{pl*2048}')
    def cmul(cr,ci,sg):
        for r in range(0,16,2):
            for q in range(2):
                i=r+q; n=sg(i)
                a(f'v_mul_f32 v{O+q}, v{D+i}, v{cr+i}\nv_mul_f32 v{O+2+q}, v{D+16+i}, v{cr+i}')
                a(f'v_fma_f32 v{O+q}, {"-" if n>0 else ""}v{D+16+i}, v{ci+i}, v{O+q}\nv_fma_f32 v{O+2+q}, {"" if n>0 else "-"}v{D+i}, v{ci+i}, v{O+2+q}')
            a(f'v_cvt_pk_bf16_f32 v{X+r//2}, v{O}, v{O+1}\nv_cvt_pk_bf16_f32 v{X+8+r//2}, v{O+2}, v{O+3}')
    a('s_waitcnt lgkmcnt(0)\ns_cmp_lg_u32 s45, 4\ns_cbranch_scc1 pb_6')
    for i in range(8): a(f'v_mov_b32 v{X+i}, 0')
    a('pb_6:')
    cmm(a,D,D+16,X,X+8,C,SP,SN,C)
    a('s_waitcnt vmcnt(0)'); wread()
    cmul(TC,TS,lambda i:-1)
    cmm(a,D,D+16,X,X+8,C,SP,SN,C,False)
    q='row_mask:0xf bank_mask:0xf'
    a(f'''v_add_f32_dpp v{O}, v{WX}, v{WX} quad_perm:[1,0,3,2] {q}
    v_subrev_f32_dpp v{O+1}, v{WX+1}, v{WX+1} quad_perm:[1,0,3,2] {q}
    s_add_u32 s31, s31, 64
    s_cmp_eq_u32 s45, 3
    s_cselect_b32 s31, 1024, s31
    v_mul_f32 v{O}, 0.5, v{O}
    v_mul_f32 v{O+1}, 0.5, v{O+1}
    s_waitcnt lgkmcnt(0)''')
    wload()
    a(f'''v_mov_b32_dpp v{O+2}, v{O} quad_perm:[3,3,3,3] {q}
    v_mov_b32_dpp v{O+3}, v{O+1} quad_perm:[3,3,3,3] {q}
    v_cndmask_b32 v{WR}, v{WR}, v{O}, s[56:57]
    v_cndmask_b32 v{WI}, v{WI}, v{O+1}, s[56:57]
    v_cndmask_b32 v{WR+8}, v{WR+8}, v{O+2}, s[56:57]
    v_cndmask_b32 v{WI+8}, v{WI+8}, v{O+3}, s[56:57]''')
    cmul(WR,WI,lambda i:1 if i<8 else -1)
    cmm(a,D,D+16,X,X+8,C,SN,SP,C)
    cmul(TC,TS,lambda i:1)
    cmm(a,D,D+16,X,X+8,C,SN,SP,C)
    a('v_xor_b32 v15, s46, v12')
    pack(D,X)
    a('s_cmp_eq_u32 s45, 4\ns_cbranch_scc1 pb_3')
    for g in range(4): a(f'v_xor_b32 v14, {16*g}, v15\nds_write_b64 v14, {vr(X+2*g,2)}')
    a('pb_3:\ns_sub_u32 s47, s32, s45\ns_cmp_eq_u32 s47, 5\ns_cbranch_scc1 pb_4')
    for g in range(4): a(f'v_xor_b32 v14, {16*g}, v15\nds_write_b64 v14, {vr(X+8+2*g,2)} offset:2048')
    a('pb_4:\ns_add_u32 s45, s45, 1\ns_cmp_lt_u32 s45, s32\ns_cbranch_scc1 pb_row')
    stamp(a)
    a('''s_add_u32 s47, s2, 1024
    s_cmp_eq_u32 s2, 0
    s_cselect_b32 s46, 32, s2
    s_cselect_b32 s47, 0, s47
    s_cselect_b32 s48, -1, 0
    s_mov_b32 s49, 0
    v_cvt_f32_u32 v11, v5
    v_mul_f32 v11, 0x3a000000, v11
    v_lshl_add_u32 v12, v4, 9, s46
    v_lshl_add_u32 v14, v4, 9, s47
    v_cvt_f32_u32 v12, v12
    v_cvt_f32_u32 v14, v14
    v_mul_f32 v12, v12, v11
    v_mul_f32 v14, v14, v11''')
    def fix():
        a(f'''v_lshlrev_b32 v15, 31, v5
        v_xor_b32 v15, {fx(-2.0**-21)}, v15
        v_mov_b32 v2, {fx(2.0**-21)}
        v_cndmask_b32 v{D+2}, v{D+2}, v2, s[48:49]
        v_cndmask_b32 v{D+4}, v{D+4}, v15, s[48:49]''')
    trig(11,(12,14),lambda s,e:64*e,amp=2.0**-20,fix=fix,dst=(P,R,Q))
    for i in range(8): a(f'v_mov_b32 v{T+i}, v{P+i}')
    a('s_cmp_lg_u32 s2, 0\ns_cbranch_scc1 pb_5')
    for i in range(4):
        a(f'v_mov_b32 v{R+i}, v{P+i}\nv_mov_b32 v{T+i}, v{Q+i}\nv_mov_b32 v{P+i}, 0\nv_mov_b32 v{Q+i}, 0\nv_mov_b32 v{R+4+i}, 0\nv_mov_b32 v{T+4+i}, 0')
    a('''pb_5:
    v_lshlrev_b32 v3, 6, v5
    v_bfe_u32 v14, v5, 1, 2
    v_lshl_add_u32 v3, v14, 4, v3
    v_lshl_add_u32 v3, v4, 3, v3
    v_add_u32 v3, s29, v3
    v_lshrrev_b32 v14, 4, v0
    v_bfe_u32 v15, v0, 2, 2
    v_lshlrev_b32 v11, 17, v14
    v_xor_b32 v14, v14, v15
    v_lshlrev_b32 v6, 12, v15
    v_lshl_add_u32 v6, v14, 6, v6
    v_and_b32 v14, 3, v0
    v_xor_b32 v14, v14, v4
    v_lshl_add_u32 v6, v14, 4, v6
    v_add_u32 v6, s29, v6
    v_xor_b32 v7, 32, v6
    v_and_b32 v14, 15, v0
    v_lshl_add_u32 v11, v14, 4, v11
    s_lshl_b32 s28, s2, 12
    s_lshl_b32 s30, s3, 8
    s_add_u32 s28, s28, s30
    s_waitcnt lgkmcnt(0)
    s_barrier''')
    def srd_i(al):
        for j in range(2):
            a(f'v_xor_b32 v14, {al*64^((2*j^(al>>1))*8)}, v13')
            for pl in range(2):
                for s in range(2): a(f'ds_read_b64_tr_b16 {vr(XB[al&1]+8*pl+4*s+2*j,2)}, v14 offset:{al*4096+pl*2048+s*1024+j*256}')
    def swr_i(al):
        pack(DB[al&1],O)
        for g in range(4):
            a(f'v_xor_b32 v14, {al*64^(g*16)}, v3')
            for pl in range(2): a(f'ds_write_b64 v14, {vr(O+8*pl+2*g,2)} offset:{al*4096+pl*2048}')
    stamp(a); sstage(srd_i,swr_i); stamp(a)
    for hz in range(2):
        for z in range(4*hz,4*hz+4):
            for pl in range(2): a(f'ds_read_b128 {vr(16+8*z+4*pl,4)}, v{6+(z&1)} offset:{pl*2048+z*256}')
        for z in range(4*hz,4*hz+4):
            for pl in range(2): a(f's_waitcnt lgkmcnt({7-2*(z&3)-pl})\nbuffer_store_dwordx4 {vr(16+8*z+4*pl,4)}, v11, s[20:23], s28 offen offset:{pl*2048}')
            a('s_add_u32 s28, s28, 0x80000')
    stamp(a); stamp_end(a,1)
```

```python
from k1 import *
def k3(a,NS=4,mp=0):
    head(a,'k3_kernel')
    TL=NS*16384
    a('''s_cmp_ge_u32 s2, 256
    s_cbranch_scc1 k3_end''')
    stamp(a,True)
    a('''    s_load_dwordx2 s[4:5], s[0:1], 0
    s_load_dwordx4 s[36:39], s[0:1], 48
    s_load_dwordx2 s[6:7], s[0:1], 72
    v_lshrrev_b32 v1, 6, v0
    v_and_b32 v0, 63, v0
    v_readfirstlane_b32 s3, v1
    s_bfe_u32 s28, s2, 0x20001
    s_lshl_b32 s28, s28, 2
    s_bfe_u32 s29, s2, 0x20003
    s_add_u32 s28, s28, s29
    s_and_b32 s29, s2, 1
    s_lshl_b32 s29, s29, 3
    s_lshr_b32 s30, s2, 5
    s_add_u32 s29, s29, s30
    s_lshr_b32 s30, s3, 2
    s_and_b32 s31, s3, 3''')
    if mp: a('s_and_b32 s28, s2, 7\ns_lshl_b32 s28, s28, 1\ns_bfe_u32 s29, s2, 0x10003\ns_add_u32 s28, s28, s29\ns_lshr_b32 s29, s2, 4')
    a('''v_lshrrev_b32 v4, 5, v0
    v_bfe_u32 v3, v0, 2, 2
    v_lshl_add_u32 v2, v4, 2, v3
    v_lshlrev_b32 v2, 11, v2
    v_bfe_u32 v3, v0, 4, 1
    v_lshl_add_u32 v2, v3, 6, v2
    v_and_b32 v3, 3, v0
    v_lshl_add_u32 v2, v3, 4, v2
    v_and_b32 v3, 32, v0
    v_xor_b32 v2, v2, v3
    s_lshl_b32 s32, s29, 7
    s_lshl_b32 s33, s31, 15
    s_add_u32 s32, s32, s33
    v_add_u32 v2, s32, v2
    v_add_u32 v5, 0x3c00, v2
    v_lshlrev_b32 v6, 4, v0
    s_lshl_b32 s32, s28, 2
    s_add_u32 s32, s32, s31
    s_mul_i32 s40, s32, 224*1024
    s_mul_i32 s33, s30, 112*1024
    s_add_u32 s40, s40, s33
    s_mul_i32 s41, s30, 1792*2048
    s_lshl_b32 s42, s3, 11
    s_lshl_b32 s43, s28, 1
    s_add_u32 s33, s43, s30
    s_lshl_b32 s33, s33, 17''')
    a('''s_lshr_b32 s34, s31, 1
    s_add_u32 s43, s43, s34
    s_and_b32 s35, s31, 1
    s_lshl_b32 s35, s35, 5
    v_and_b32 v8, 15, v0
    v_add_u32 v8, s35, v8
    v_lshrrev_b32 v7, 2, v0
    v_add_u32 v7, s35, v7
    v_lshlrev_b32 v7, 16, v7
    v_and_b32 v3, 3, v0
    v_lshl_add_u32 v7, v3, 4, v7
    s_mov_b32 s46, 0x100000
    s_lshl_b32 s43, s43, 11
    s_lshl_b32 s35, s29, 7
    s_add_u32 s43, s43, s35
    s_lshl_b32 s35, s30, 6
    s_add_u32 s43, s43, s35
    v_add_u32 v7, s43, v7
    s_waitcnt lgkmcnt(0)''')
    srd(a,8,6,H_OFF,2048*3584*2); srd(a,12,36,0,3584*2048); srd(a,16,6,T_OFF,4<<20); srd(a,20,4,0,4<<20); srd(a,24,38,0,4<<20)
    HF=64
    def loads(slot):
        r=[]
        r.append(f's_add_u32 m0, s42, {slot*16384}\nbuffer_load_dwordx4 v2, s[12:15], s41 offen lds')
        r.append('buffer_load_dwordx4 v5, s[12:15], s41 offen offset:1024 lds\ns_add_u32 s41, s41, 64*2048')
        for s in range(4):
            r.append(f'buffer_load_dwordx4 {vr(HF+slot*16+4*s,4)}, v6, s[8:11], s40 offen offset:{1024*s}'+('\ns_add_u32 s40, s40, 4096' if s==3 else ''))
        return r
    for st in range(NS-1):
        for x in loads(st): a(x)
        if st==0:
            a(f'''s_add_u32 m0, s42, {TL}
            buffer_load_dwordx4 v2, s[16:19], s33 offen lds
            buffer_load_dwordx4 v5, s[16:19], s33 offen offset:1024 lds
            buffer_load_dwordx4 v[56:59], v7, s[20:23], 0 offen
            buffer_load_dwordx4 v[60:63], v7, s[20:23], s46 offen''')
    a(f'''v_lshrrev_b32 v4, 4, v0
    v_lshlrev_b32 v9, 9, v4
    v_and_b32 v3, 1, v4
    v_lshl_add_u32 v9, v3, 5, v9
    v_bfe_u32 v3, v0, 2, 2
    v_lshl_add_u32 v9, v3, 6, v9
    v_and_b32 v3, 3, v0
    v_lshl_add_u32 v9, v3, 3, v9
    s_lshl_b32 s35, s34, 13
    s_lshl_b32 s44, s30, 8
    s_add_u32 s35, s35, s44
    s_add_u32 s35, s35, {TL}
    v_add_u32 v1, s35, v9
    s_lshl_b32 s35, s30, 13
    v_add_u32 v9, s35, v9
    v_xor_b32 v10, 32, v9''')
    WF=HF+NS*16
    GF=WF+32
    a('v_lshlrev_b32 v4, 1, v4\nv_cvt_f32_u32 v4, v4\nv_cmp_gt_u32 vcc, 16, v0')
    for ph in range(2):
        a(f'''v_add_u32 v11, {16*ph}, v8
        v_cvt_f32_u32 v11, v11
        v_mul_f32 v11, 0x3c800000, v11
        v_mul_f32 v12, v4, v11
        v_add_f32 v13, 0x3e800000, v12''')
        for s in range(2):
            for j in range(2):
                for e2 in range(2):
                    k=16*s+8*j+e2
                    a(f'v_fmamk_f32 v14, v11, {fx(k)}, v12\nv_fmamk_f32 v15, v11, {fx(k)}, v13')
                    if k==0: a('v_mul_f32 v3, 0x42000000, v11\nv_cndmask_b32 v15, v15, v3, vcc')
                    a(f'v_cos_f32 v14, v14\nv_cos_f32 v15, v15\nv_cvt_pk_bf16_f32 v{GF+8*ph+4*s+2*j+e2}, v14, v15')
    for i in range(32): a(f'v_mov_b32 v{16+i}, 0')
    def rd(slot,s):
        return [f'ds_read_b64_tr_b16 {vr(WF+s*16+nb*8+t*4+j*2,2)}, v{9+t} offset:{slot*16384+(8*s+4*j)*512+nb*256}' for nb in range(2) for t in range(2) for j in range(2)]
    stamp(a); a(f's_waitcnt vmcnt({6*(NS-2)+4})\ns_barrier'); stamp(a)
    for x in rd(0,0): a(x)
    def stage(slot,ld,last,vm):
        L=loads((slot+NS-1)%NS) if ld else []
        for s in range(2):
            R=rd(slot,1) if s==0 else ([] if last else rd((slot+1)%NS,0))
            if s==0 and L: y=L[0].split('\n'); a(y[0]); L[0]=y[1]
            a(f's_waitcnt vmcnt({vm}) lgkmcnt(0)\ns_barrier' if s==1 and not last else 's_waitcnt lgkmcnt(0)')
            for nb in range(2):
                for t in range(2):
                    for ph in range(2):
                        acc=vr(16+16*nb+8*ph+4*t,4)
                        a(f'v_mfma_f32_16x16x32_bf16 {acc}, {vr(WF+s*16+nb*8+t*4,4)}, {vr(HF+slot*16+8*s+4*ph,4)}, {acc}')
                        if R: a(R.pop(0)); a(R.pop(0))
                        elif L: a(L.pop(0))
            while L: a(L.pop(0))
    nst=28; nloop=(nst-(NS-1))//NS; rem=nst-nloop*NS
    a(f's_mov_b32 s45, {nloop}\nk3_loop:')
    for u in range(NS): stage(u,True,False,6*(NS-2))
    a('s_sub_u32 s45, s45, 1\ns_cmp_lg_u32 s45, 0\ns_cbranch_scc1 k3_loop')
    for u in range(rem):
        left=rem-1-u
        stage(u%NS,left>=NS-1,left==0,6*max(0,min(NS-2,left-1)))
    stamp(a)
    a('v_xor_b32 v2, 32, v1')
    for t in range(2):
        for s in range(2):
            for j in range(2): a(f'ds_read_b64_tr_b16 {vr(HF+8*t+4*s+2*j,2)}, v{1+t} offset:{(8*s+4*j)*512}')
    a('''s_nop 0
    s_lshl_b32 s35, s3, 12
    v_add_u32 v11, s35, v6
    s_xor_b32 s35, s35, 0x4000
    v_add_u32 v12, s35, v6
    s_cmp_eq_u32 s30, 0
    s_cbranch_scc1 k3_a''')
    for i in range(4): a(f'ds_write_b128 v11, {vr(16+4*i,4)} offset:{1024*i}')
    for i in range(16): a(f'v_mov_b32 v{16+i}, v{32+i}')
    a('s_branch k3_b\nk3_a:\ns_nop 7')
    for i in range(4): a(f'ds_write_b128 v11, {vr(32+4*i,4)} offset:{1024*i}')
    a('k3_b:\ns_waitcnt lgkmcnt(0)')
    SA=HF+16
    for s in range(2):
        for ph in range(2):
            for t in range(2):
                acc=vr(SA+8*ph+4*t,4); a(f'v_mfma_f32_16x16x32_bf16 {acc}, {vr(HF+8*t+4*s,4)}, {vr(GF+8*ph+4*s,4)}, {"0" if s==0 else acc}')
    a('s_barrier')
    for i in range(4): a(f'ds_read_b128 {vr(32+4*i,4)}, v12 offset:{1024*i}')
    a('''s_mul_i32 s35, s3, 2560
    s_add_u32 s35, s35, 32768
    v_and_b32 v13, 15, v0
    v_mul_u32_u24 v13, 80, v13
    v_lshrrev_b32 v14, 4, v0
    v_lshl_add_u32 v13, v14, 3, v13
    v_add_u32 v13, s35, v13
    v_lshrrev_b32 v14, 2, v0
    v_mul_u32_u24 v14, 80, v14
    v_and_b32 v3, 3, v0
    v_lshl_add_u32 v14, v3, 4, v14
    v_add_u32 v14, s35, v14''')
    for pp in range(2):
        a(f's_waitcnt lgkmcnt({2+pp})')
        R=range(8*pp,8*pp+8)
        for i in R: a(f'v_add_f32 v{16+i}, v{16+i}, v{32+i}')
        for i in R: a(f'v_mul_f32 v{32+i}, 0xbfb8aa3b, v{16+i}')
        for i in R: a(f'v_exp_f32 v{32+i}, v{32+i}')
        for i in R: a(f'v_add_f32 v{32+i}, 1.0, v{32+i}')
        for i in R: a(f'v_rcp_f32 v{32+i}, v{32+i}')
        for i in R: a(f'v_mul_f32 v{16+i}, v{16+i}, v{SA+i}')
        for i in R: a(f'v_mul_f32 v{16+i}, v{16+i}, v{32+i}')
        d=48+4*pp
        for j in range(4): a(f'v_cvt_pk_bf16_f32 v{d+j}, v{16+8*pp+2*j}, v{17+8*pp+2*j}')
        for t in range(2): a(f'ds_write_b64 v13, {vr(d+2*t,2)} offset:{pp*1280+t*32}')
        a(f'ds_read_b128 {vr(HF+4*pp,4)}, v14 offset:{pp*1280}')
    for pp in range(2):
        a(f's_waitcnt lgkmcnt({3-3*pp})')
        for j in range(4):
            x=56+4*pp+j; d=HF+4*pp+j
            a(f'''v_lshlrev_b32 v16, 16, v{x}
            v_and_b32 v17, 0xffff0000, v{x}
            v_lshlrev_b32 v18, 16, v{d}
            v_and_b32 v19, 0xffff0000, v{d}
            v_add_f32 v16, v16, v18
            v_add_f32 v17, v17, v19
            v_cvt_pk_bf16_f32 v{x}, v16, v17''')
        a(f'buffer_store_dwordx4 {vr(56+4*pp,4)}, v7, s[24:27], {"s46" if pp else 0} offen')
    stamp(a); stamp_end(a,2)
    a('k3_end:\ns_endpgm')
    return GF+16, TL+16384
```

```python
import sys
from k1 import *
from k2 import k2
from k3 import k3
def build(path,**kw):
    a=Asm(); St.on='stamp' in path
    k1(a,**kw.get('k1',{})); v2,l2=k2(a,**kw.get('k2',{})); v3,l3=k3(a,**kw.get('k3',{}))
    if kw.get('al',True): print('align',align8(a))
    ref=open('recurrent_scan__spectral_gfnet__glu_gated_bilinear__prompt.s.ref').read().split('\n')
    hdr='\n'.join(ref[:11])+'\n'
    hdr+='; @launch kernel=k1_kernel grid=(256,1,1) block=(256,1,1) lds=34816\n'
    hdr+=f'; @launch kernel=k2_kernel grid=(256,1,1) block=(512,1,1) lds={l2}\n'
    hdr+=f'; @launch kernel=k3_kernel grid=(256,1,1) block=(512,1,1) lds={l3}\n'
    hdr+='.amdgcn_target "amdgcn-amd-amdhsa--gfx950"\n.text\n'
    t=hdr+a.text()+'.section .rodata,"a"\n'+desc('k1_kernel',212)+desc('k2_kernel',v2,kw.get('acc2'))+desc('k3_kernel',v3)
    open(path,'w').write(t); print(path,len(a.L),'lines, nops',a.nops)
if __name__=='__main__':
    build('recurrent_scan__spectral_gfnet__glu_gated_bilinear__prompt.s')
    build('stamp.s')
    build('stamp_a.s',k2=dict(exp='snake'),k3=dict(mp=1))
    build('stamp_b.s',k2=dict(exp='snake swap'),k3=dict(mp=1))
```

```python
from asmlib import *
XN_OFF=0; A0_OFF=4<<20; H_OFF=8<<20; T_OFF=24<<20; WD_OFF=32<<20; XC_OFF=48<<20
def srd(a,d,b,off,size):
    if off: a(f's_add_u32 s{d}, s{b}, {off}\ns_addc_u32 s{d+1}, s{b+1}, 0')
    else: a(f's_mov_b32 s{d}, s{b}\ns_mov_b32 s{d+1}, s{b+1}')
    a(f's_mov_b32 s{d+2}, {size}\ns_mov_b32 s{d+3}, 0x20000')
class St:
    on=False; n=0
def stamp(a,first=False):
    if not St.on: return
    if first: St.n=0; a('s_memtime s[90:91]')
    a(f's_memrealtime s[{60+2*St.n}:{61+2*St.n}]'); St.n+=1
    if first: a('s_load_dwordx2 s[94:95], s[0:1], 72')
    a('s_waitcnt lgkmcnt(0)')
def stamp_end(a,ki,n0=None,cyc=False,w=True):
    if not St.on: return
    a('s_waitcnt vmcnt(0)' if w else 's_nop 0'); stamp(a); a('s_memtime s[92:93]\ns_waitcnt lgkmcnt(0)')
    srd(a,8,94,(64<<20)+ki*16384,16384)
    a('s_lshl_b32 s12, s2, 6\nv_mov_b32 v1, 0')
    for j in range(St.n): a(f'v_writelane_b32 v1, s{60+2*j}, {j}')
    a(f'v_writelane_b32 v1, s90, 13\nv_writelane_b32 v1, s92, 14\nv_writelane_b32 v1, {St.n}, 15')
    a('v_writelane_b32 v1, s88, 12' if cyc else 'v_writelane_b32 v1, 0, 12')
    a('v_lshlrev_b32 v2, 2, v0\nv_cmp_gt_u32 vcc, 16, v0\ns_cmp_eq_u32 s3, 0\ns_cselect_b64 vcc, vcc, 0\nv_mov_b32 v3, 0x100000\nv_cndmask_b32 v2, v3, v2, vcc\nbuffer_store_dword v1, v2, s[8:11], s12 offen')
    if n0 is not None: St.n=n0
def head(a,name):
    a(f'.globl {name}\n.p2align 8\n.type {name},@function\n{name}:')
def desc(name,vg,acc=None):
    acc=acc or (vg+3)//4*4
    return f'''.p2align 6
.amdhsa_kernel {name}
  .amdhsa_next_free_vgpr {vg}
  .amdhsa_next_free_sgpr 96
  .amdhsa_accum_offset {acc}
  .amdhsa_group_segment_fixed_size 0
  .amdhsa_kernarg_size 80
  .amdhsa_user_sgpr_count 2
  .amdhsa_user_sgpr_kernarg_segment_ptr 1
  .amdhsa_system_sgpr_workgroup_id_x 1
.end_amdhsa_kernel
'''
def trlane(a,d,l,t,hmul):
    a(f'''v_lshrrev_b32 v{d}, 5, v{l}
    v_mul_u32_u24 v{d}, {hmul}, v{d}
    v_bfe_u32 v{t}, v{l}, 2, 2
    v_lshl_add_u32 v{d}, v{t}, 6, v{d}
    v_bfe_u32 v{t}, v{l}, 4, 1
    v_lshl_add_u32 v{d}, v{t}, 5, v{d}
    v_and_b32 v{t}, 3, v{l}
    v_lshl_add_u32 v{d}, v{t}, 3, v{d}''')
def k1(a,sc='',rows=128,early=6,at=31,touch=0,nowait=0):
    head(a,'k1_kernel')
    a('s_cmp_ge_u32 s2, 256\ns_cbranch_scc1 k1_end')
    stamp(a,True)
    a('''s_load_dwordx2 s[4:5], s[0:1], 0
    s_load_dwordx2 s[6:7], s[0:1], 72
    s_load_dwordx4 s[36:39], s[0:1], 8
    s_load_dwordx4 s[40:43], s[0:1], 32
    s_load_dwordx2 s[80:81], s[0:1], 48
    v_lshrrev_b32 v1, 6, v0
    v_and_b32 v0, 63, v0
    v_readfirstlane_b32 s3, v1
    s_and_b32 s20, s2, 31
    s_lshr_b32 s21, s2, 5''')
    for tg in range(8):
        a(f's_add_u32 s{24+tg}, s21, {tg}\ns_and_b32 s{24+tg}, s{24+tg}, 7\ns_lshl_b32 s{24+tg}, s{24+tg}, 8')
    a('''v_bfe_u32 v3, v0, 2, 2
    v_lshl_add_u32 v2, v1, 4, v3
    v_lshlrev_b32 v2, 16, v2
    s_lshl_b32 s22, s20, 11
    v_add_u32 v2, s22, v2
    v_lshrrev_b32 v161, 4, v0
    v_lshl_add_u32 v2, v161, 6, v2
    v_and_b32 v160, 3, v0
    v_lshl_add_u32 v4, v160, 4, v2
    v_add_u32 v5, 0x40000, v4
    v_add_u32 v6, 0x80000, v4
    v_add_u32 v7, 0xc0000, v4
    v_lshlrev_b32 v173, 4, v0
    s_waitcnt lgkmcnt(0)''')
    srd(a,8,4,0,4<<20)
    for t in range(32):
        a(f'buffer_load_dwordx4 {vr(16+4*t,4)}, v{4+(t&3)}, s[8:11], s{24+(t>>2)} offen')
    srd(a,12,6,XN_OFF,4<<20); srd(a,16,6,A0_OFF,4<<20)
    NPF=0
    srd(a,44,36,0,2048*1026); srd(a,48,38,0,2048*1026); srd(a,52,40,0,rows*7168); srd(a,56,42,0,rows*7168)
    a('s_lshl_b32 s36, s2, 2\ns_add_u32 s36, s36, s3\ns_lshl_b32 s37, s36, 11\ns_lshl_b32 s36, s36, 10')
    PFL=[]
    for j in range((rows*7+1023)//1024):
        PFL+=[f'buffer_load_dwordx4 v[208:211], v173, s[52:55], s36 offen',f'buffer_load_dwordx4 v[208:211], v173, s[56:59], s36 offen\ns_add_u32 s36, s36, 0x100000']
        if j==0: PFL+=[f'buffer_load_dwordx4 v[208:211], v173, {sr(d,4)}, s37 offen offset:{o}' for d in (44,48) for o in (0,1024)]
    if touch:
        a('s_lshl_b32 s36, s36, 3\nv_lshlrev_b32 v209, 7, v0\nv_lshlrev_b32 v210, 5, v0')
        PFL=[f'buffer_load_dword v208, v210, {sr(d,4)}, s37 offen' for d in (44,48)]+[f'buffer_load_dword v208, v209, {sr(d,4)}, s36 offen' for d in (52,56)]
        if touch==2: srd(a,40,80,0,3584*2048); PFL.append('buffer_load_dword v208, v209, s[40:43], s36 offen')
    NPF=min(early,len(PFL))
    for x in PFL[:NPF]: a(x)
    PFL=PFL[NPF:]
    for i in range(4): a(f'v_mov_b32 v{12+i}, 0x3f803f80')
    a('''s_and_b32 s23, s3, 1
    s_lshl_b32 s23, s23, 5
    v_and_b32 v174, 31, v0
    v_add_u32 v162, s23, v174
    v_lshrrev_b32 v163, 1, v162
    v_and_b32 v164, 1, v162
    v_cmp_eq_u32 vcc, 1, v162
    v_cndmask_b32 v163, v163, 32, vcc
    v_cndmask_b32 v164, v164, 0, vcc
    v_cvt_f32_u32 v163, v163
    v_cvt_f32_u32 v164, v164
    v_mul_f32 v163, 0x3c800000, v163
    v_mul_f32 v164, 0x3e800000, v164
    v_lshrrev_b32 v165, 5, v0
    v_lshlrev_b32 v166, 3, v165
    v_cvt_f32_u32 v166, v166
    v_fma_f32 v164, v166, v163, v164''')
    for s in range(4):
        for e in range(0,8,2):
            a(f'''v_fmamk_f32 v166, v163, {fx(16*s+e)}, v164
            v_fmamk_f32 v167, v163, {fx(16*s+e+1)}, v164
            v_cos_f32 v166, v166
            v_cos_f32 v167, v167
            v_cvt_pk_bf16_f32 v{144+4*s+e//2}, v166, v167''')
    a('''s_lshl_b32 s34, s20, 17
    s_lshl_b32 s32, s21, 13
    s_add_u32 s34, s34, s32
    s_lshr_b32 s33, s3, 1
    s_lshl_b32 s32, s33, 16
    s_add_u32 s34, s34, s32
    s_lshl_b32 s32, s23, 5
    s_add_u32 s34, s34, s32
    s_add_u32 s35, s34, 4096
    s_lshl_b32 s32, s3, 12
    v_add_u32 v168, s32, v173
    v_lshlrev_b32 v169, 10, v3
    v_lshl_add_u32 v169, v160, 6, v169
    v_lshl_add_u32 v169, v161, 4, v169
    v_add_u32 v169, s32, v169
    v_mul_u32_u24 v172, 80, v3
    s_mul_i32 s32, s3, 4608
    s_add_u32 s32, s32, 16384
    v_mul_u32_u24 v175, 144, v174
    v_lshl_add_u32 v175, v165, 3, v175
    v_add_u32 v175, s32, v175
    v_lshrrev_b32 v166, 3, v0
    v_and_b32 v167, 7, v0
    v_mul_u32_u24 v162, 144, v166
    v_lshl_add_u32 v162, v167, 4, v162
    v_add_u32 v162, s32, v162
    v_lshlrev_b32 v171, 16, v166
    v_lshl_add_u32 v171, v167, 4, v171
    s_lshl_b32 s22, s20, 11
    s_lshl_b32 s32, s21, 8
    s_add_u32 s22, s22, s32
    s_lshl_b32 s32, s33, 7
    s_add_u32 s22, s22, s32
    s_lshl_b32 s32, s23, 16
    s_add_u32 s22, s22, s32
    v_cmp_eq_u32 s[24:25], 1, v160
    v_cmp_eq_u32 s[26:27], 2, v160
    v_cmp_eq_u32 s[28:29], 3, v160''')
    trlane(a,170,0,166,2048)
    a('s_lshl_b32 s32, s33, 9\nv_add_u32 v170, s32, v170')
    stamp(a)
    SU,GR=176,192
    for t in range(32):
        a(f's_waitcnt vmcnt({31+NPF-t})')
        if t in(0,31): stamp(a)
        if t>=at and PFL and t<31: a(PFL.pop(0)); NPF+=1
        d=vr(16+4*t,4); u=t&3
        a(f'v_mfma_f32_16x16x32_bf16 {vr(SU+4*u,4)}, v[12:15], {d}, {"0" if t<4 else vr(SU+4*u,4)}')
        a(f'v_mfma_f32_16x16x32_bf16 {vr(GR+4*u,4)}, {d}, {d}, {"0" if t<4 else vr(GR+4*u,4)}')
    if at<40:
        for x in PFL: a(x)
        PFL=[]
    def each(f):
        for u in range(4): a(f.replace('S1',f'v{SU+4*u+1}').replace('G1',f'v{GR+4*u+1}').replace('G2',f'v{GR+4*u+2}').replace('G3',f'v{GR+4*u+3}').replace('S',f'v{SU+4*u}').replace('G',f'v{GR+4*u}'))
    for f in ['v_cndmask_b32 G, G, G1, s[24:25]','v_cndmask_b32 G, G, G2, s[26:27]','v_cndmask_b32 G, G, G3, s[28:29]',
      'v_add_f32_dpp G, G, G quad_perm:[1,0,3,2] row_mask:0xf bank_mask:0xf','v_add_f32_dpp G, G, G quad_perm:[2,3,0,1] row_mask:0xf bank_mask:0xf',
      'ds_bpermute_b32 G, v172, G',
      'v_add_f32_dpp S, S, S quad_perm:[1,0,3,2] row_mask:0xf bank_mask:0xf','v_add_f32_dpp S, S, S quad_perm:[2,3,0,1] row_mask:0xf bank_mask:0xf',
      'v_mul_f32 S, 0x3a800000, S','v_mul_f32 S1, S, S','v_cvt_pk_bf16_f32 S, S, S','v_and_b32 S, 0xffff0000, S',None,
      'v_mul_f32 G, 0x3a800000, G','v_sub_f32 G, G, S1','v_max_f32 G, 0, G','v_cvt_pk_bf16_f32 G, G, G','v_and_b32 G, 0xffff0000, G',
      'v_add_f32 G, 0x3727c5ac, G','v_cvt_pk_bf16_f32 G, G, G','v_and_b32 G, 0xffff0000, G','v_sqrt_f32 G, G',
      'v_cvt_pk_bf16_f32 G, G, G','v_and_b32 G, 0xffff0000, G','v_rcp_f32 G, G']:
        if f: each(f)
        else: a('s_waitcnt lgkmcnt(0)')
    for u in range(4):
        for j in range(4):
            r=16+4*u+j
            a(f'''v_lshlrev_b32 v5, 16, v{r}
            v_and_b32 v6, 0xffff0000, v{r}
            v_sub_f32 v5, v5, v{SU+4*u}
            v_sub_f32 v6, v6, v{SU+4*u}
            v_cvt_pk_bf16_f32 v7, v5, v6
            v_lshlrev_b32 v5, 16, v7
            v_and_b32 v6, 0xffff0000, v7
            v_mul_f32 v5, v5, v{GR+4*u}
            v_mul_f32 v6, v6, v{GR+4*u}
            v_cvt_pk_bf16_f32 v{r}, v5, v6''')
        a(f'ds_write_b128 v168, {vr(16+4*u,4)} offset:{u*1024}')
    for t in range(4): a(f'ds_read_b128 {vr(112+4*t,4)}, v169 offset:{t*256}')
    a('s_waitcnt lgkmcnt(0)\ns_barrier'); stamp(a)
    for nb in range(2):
        for s in range(4):
            for j in range(2):
                a(f'ds_read_b64_tr_b16 {vr(32+nb*16+s*4+j*2,2)}, v170 offset:{s*4096+j*1024+nb*256}')
    for t in range(4): a(f'buffer_store_dwordx4 {vr(112+4*t,4)}, v173, s[12:15], s{34+(t>>1)} offen offset:{(t&1)*2048}{sc}')
    if at==40:
        for x in PFL: a(x)
        PFL=[]
    for nb in range(2):
        a(f's_waitcnt lgkmcnt({8-8*nb})')
        for s in range(4):
            acc=vr(64+16*nb,16)
            a(f'v_mfma_f32_32x32x16_bf16 {acc}, {vr(32+nb*16+s*4,4)}, {vr(144+4*s,4)}, {"0" if s==0 else acc}')
    for nb in range(2):
        for g in range(4):
            b=64+16*nb+4*g; d=96+8*nb+2*g
            for j in range(2): a(f'v_cvt_pk_bf16_f32 v{d+j}, v{b+2*j}, v{b+2*j+1}')
            a(f'ds_write_b64 v175, {vr(d,2)} offset:{nb*64+g*16}')
    for z in range(4): a(f'ds_read_b128 {vr(16+4*z,4)}, v162 offset:{z*8*144}')
    for z in range(4):
        a(f's_waitcnt lgkmcnt({3-z})\nbuffer_store_dwordx4 {vr(16+4*z,4)}, v171, s[16:19], s22 offen{sc}\ns_add_u32 s22, s22, 0x80000')
    for x in PFL: a(x)
    stamp(a); stamp_end(a,0,w=not nowait)
    a('k1_end:\ns_endpgm')
```

```python
from k1 import *
M32='v_mfma_f32_32x32x16_bf16'
def k2(a,NS=4,fft=True,pf=True,sc='',exp='snake',wd=None,wsc='',pfst=None,roll=None,fill=None):
    head(a,'k2_kernel')
    a('''s_cmp_ge_u32 s2, 256
    s_cbranch_scc1 k2_end''')
    stamp(a,True)
    a('''    s_load_dwordx4 s[36:39], s[0:1], 32
    s_load_dwordx4 s[40:43], s[0:1], 8
    s_load_dwordx2 s[48:49], s[0:1], 48
    s_load_dwordx2 s[6:7], s[0:1], 72
    v_lshrrev_b32 v1, 6, v0
    v_and_b32 v0, 63, v0
    v_readfirstlane_b32 s3, v1
    s_cmp_lt_u32 s2, 32
    s_cbranch_scc1 k2_fft
    s_lshr_b32 s30, s2, 3
    s_sub_u32 s30, s30, 4
    s_and_b32 s28, s2, 1
    s_lshl_b32 s28, s28, 2
    s_and_b32 s31, s30, 3
    s_add_u32 s28, s28, s31
    s_bfe_u32 s29, s2, 0x20001
    s_mul_i32 s29, s29, 7
    s_lshr_b32 s31, s30, 2
    s_add_u32 s29, s29, s31
    v_lshlrev_b32 v2, 4, v0
    v_bfe_u32 v4, v0, 2, 2
    v_mul_u32_u24 v3, 7168, v4
    v_lshrrev_b32 v4, 4, v0
    v_lshl_add_u32 v3, v4, 6, v3
    v_and_b32 v4, 3, v0
    s_and_b32 s32, s3, 2
    v_xor_b32 v4, s32, v4
    v_lshl_add_u32 v3, v4, 4, v3
    s_lshl_b32 s32, s28, 3
    s_add_u32 s32, s32, s3
    s_lshl_b32 s32, s32, 16
    s_mul_i32 s33, s3, 4*7168
    s_lshl_b32 s34, s29, 8
    s_add_u32 s33, s33, s34
    s_lshl_b32 s34, s3, 11
    s_lshl_b32 s35, s3, 10
    s_sub_u32 s34, s34, 0x400
    s_waitcnt lgkmcnt(0)''')
    srd(a,8,6,XN_OFF,4<<20); srd(a,12,36,0,7168*1024); srd(a,16,38,0,7168*1024); srd(a,20,6,H_OFF,2048*3584*2)
    def loads(slot):
        o=slot*32768
        return [f's_add_u32 m0, s35, {o+16384}\nbuffer_load_dwordx4 v3, s[12:15], s33 offen lds',
                f's_add_u32 m0, s35, {o+24576}\nbuffer_load_dwordx4 v3, s[16:19], s33 offen lds\ns_add_u32 s33, s33, 32*7168',
                f's_add_u32 m0, s34, {o+1024}\nbuffer_load_dwordx4 v2, s[8:11], s32 offen lds',
                'buffer_load_dwordx4 v2, s[8:11], s32 offen offset:1024 lds\ns_add_u32 s32, s32, 2048']
    stamp(a)
    for st in range(NS):
        for x in loads(st): a(x)
    stamp(a)
    NPF=0
    a('s_sub_u32 s46, s2, 32\ns_lshl_b32 s46, s46, 3\ns_add_u32 s46, s46, s3')
    srd(a,24,48,0,3584*2048)
    if wd:
        srd(a,52,6,WD_OFF,3584*2048)
        a('''s_lshr_b32 s50, s46, 2
        s_and_b32 s51, s46, 3
        s_lshl_b32 s56, s50, 14
        s_lshl_b32 s47, s51, 9
        s_add_u32 s56, s56, s47
        s_lshl_b32 s50, s50, 10
        s_mul_i32 s51, s51, 4*458752
        s_add_u32 s57, s50, s51
        v_lshrrev_b32 v4, 5, v0
        v_bfe_u32 v14, v0, 2, 2
        v_lshl_add_u32 v14, v4, 2, v14
        v_lshlrev_b32 v14, 11, v14
        v_bfe_u32 v4, v0, 4, 1
        v_lshl_add_u32 v14, v4, 6, v14
        v_and_b32 v4, 3, v0
        v_lshl_add_u32 v14, v4, 4, v14
        v_and_b32 v4, 32, v0
        v_xor_b32 v14, v14, v4''')
    if pf:
        r0=128 if pf is True else pf; per=(1024-r0)*4
        a(f's_mul_i32 s47, s46, {per}\ns_add_u32 s47, s47, {r0*7168}')
        PF=[f'buffer_load_dwordx4 v[116:119], v2, {sr(d,4)}, s47 offen offset:{min(o,per-1024)}' for d in (12,16) for o in range(0,per,1024)]
        if not pfst:
            for x in PF: a(x)
            NPF=len(PF)
    a('''s_lshl_b32 s46, s46, 12
    s_and_b32 s30, s3, 3
    s_lshr_b32 s31, s3, 2
    v_lshrrev_b32 v4, 4, v0
    v_lshlrev_b32 v8, 11, v4
    v_and_b32 v4, 1, v4
    v_lshl_add_u32 v8, v4, 5, v8
    v_bfe_u32 v4, v0, 2, 2
    v_lshl_add_u32 v8, v4, 6, v8
    v_and_b32 v4, 3, v0
    v_lshl_add_u32 v8, v4, 3, v8
    s_lshl_b32 s44, s30, 8
    s_add_u32 s44, s44, 16384
    v_add_u32 v8, s44, v8
    s_lshl_b32 s44, s31, 13
    v_add_u32 v5, s44, v2
    v_add_u32 v6, 0x10000, v5
    v_add_u32 v7, 0x20000, v5
    v_add_u32 v9, 0x10000, v8
    v_add_u32 v10, 0x20000, v8
    v_xor_b32 v11, 32, v8
    v_xor_b32 v12, 32, v9
    v_xor_b32 v13, 32, v10''')
    ACC=128; XF=16; WFR=48
    for i in range(128): a(f'v_accvgpr_write_b32 a{i}, 0' if 'agpr' in exp else f'v_mov_b32 v{ACC+i}, 0')
    def rdx(slot,hf):
        return [f'ds_read_b128 {vr(XF+16*hf+4*i,4)}, v{5+slot//2} offset:{(slot&1)*32768+(4*hf+i)*1024}' for i in range(4)]
    def rdw(slot,buf):
        return [f'ds_read_b64_tr_b16 {vr(WFR+16*buf+8*mat+4*t+2*j,2)}, v{8+3*t+slot//2} offset:{(slot&1)*32768+mat*8192+j*1024}' for mat in range(2) for t in range(2) for j in range(2)]
    def mm(hf,buf,F):
        n=0
        for i0 in range(4):
            for c0 in range(4):
                i,c=i0,c0
                if 'snake' in exp and i0&1: c=3-c0
                if 'swap' in exp: i,c=c,i
                acc=vr(ACC+(4*hf+i)*16+4*c,4)
                if 'agpr' in exp: acc='a[%d:%d]'%((4*hf+i)*16+4*c,(4*hf+i)*16+4*c+3)
                a(f'v_mfma_f32_16x16x32_bf16 {acc}, {vr(WFR+16*buf+4*c,4)}, {vr(XF+16*hf+4*i,4)}, {acc}')
                if n in F: a(F[n])
                n+=1
    stamp(a); a(f's_waitcnt vmcnt({4*(NS-1)+NPF})\ns_barrier'); stamp(a)
    for x in rdw(0,0)+rdx(0,0): a(x)
    def stage(st,ld,last,vm,extra=[],x15=None):
        slot=st%NS; buf=st&1
        F=dict(enumerate(rdx(slot,1))) if ('noread' not in exp or st==0) else {}
        if 'nodma' in exp: ld=False; vm=63
        for i,x in enumerate(loads((slot-1)%NS) if ld else extra):
            y=x.split('\n')
            if y[0].startswith('s_add_u32 m0'): F[4+3*i]=y[0]; y=y[1:]
            F[5+3*i]='\n'.join(y)
        if x15: F[15]=x15
        a('s_waitcnt lgkmcnt(0)')
        mm(0,buf,F)
        a('s_waitcnt lgkmcnt(0)' if last else f's_waitcnt vmcnt({vm}) lgkmcnt(0)\ns_barrier')
        mm(1,buf,{} if last else dict(enumerate(rdw((slot+1)%NS,buf^1)+rdx((slot+1)%NS,0))))
    nst=32; U=NS if NS%2==0 else 2*NS
    pre=NS-1; nloop=(nst-NS+1-pre)//U
    XR={}; XN={}
    if roll:
        R0,PRE=roll
        a(f's_lshr_b32 s47, s46, 3\ns_add_u32 s47, s47, {R0*7168}\nv_lshlrev_b32 v15, 3, v0\ns_add_u32 s58, s56, 384\ns_add_u32 s59, s57, 3*458752')
        g='buffer_load_dwordx2 v[116:117], v15, s[12:15], s47 offen'; u='buffer_load_dwordx2 v[116:117], v15, s[16:19], s47 offen\ns_add_u32 s47, s47, 128*7168'
        l='buffer_load_dwordx4 v[96:99], v14, s[24:27], s56 offen\ns_add_u32 s56, s56, 128\ns_min_u32 s56, s56, s58'
        if PRE: XR[0]=g; XR[1]=u
        XR[2]=l
        for j in range(nloop): XR[3+4*j]=g; XR[5+4*j]=u; XR[6+4*j]=f'buffer_store_dwordx4 v[96:99], v2, s[52:55], s57 offen{wsc}\ns_add_u32 s57, s57, 458752\ns_min_u32 s57, s57, s59\n'+l
        XN={k:v.count('buffer') for k,v in XR.items()}
    xn=lambda st: sum(XN.get(j,0) for j in range(st-2,st+1))
    for st in range(pre): stage(st,st>0,False,4*(NS-2)+NPF+xn(st),x15=XR.get(st))
    if St.on: a('s_memtime s[90:91]'); stamp(a)
    if wd and not roll:
        X={}
        for i in range(4):
            X[wd[0][i]]=f'buffer_load_dwordx4 {vr(96+4*i,4)}, v14, s[24:27], s56 offen offset:{128*i}'
            X[wd[1][i]]=f'buffer_store_dwordx4 {vr(96+4*i,4)}, v2, s[52:55], s57 offen{wsc}\ns_add_u32 s57, s57, 458752'
            assert wd[1][i]>=wd[0][i]+4
        if fill:
            srd(a,80,6,XC_OFF,1792*5120); a('s_lshr_b32 s84, s46, 2\ns_add_u32 s84, s84, s46')
            for i in range(4): a(f'v_mov_b32 v{112+i}, -1')
            for i,st in enumerate(fill): X[st]=X.get(st,'')+f'\nbuffer_store_dwordx4 v[112:115], v2, s[80:83], s84 offen sc1\ns_add_u32 s84, s84, 1024'
        if pfst:
            for st,x in zip(pfst,PF): assert st not in X; X[st]=x
        if 'nox' in exp: X={max(X):'s_nop 0'}
        nb=(max(X)+1-pre+U-1)//U
        for st in range(pre,pre+nb*U): stage(st,True,False,4*(NS-2)+sum(X.get(j,'').count('buffer') for j in range(st-2,st+1)),x15=X.get(st))
        pre+=nb*U; nloop-=nb
    a(f's_mov_b32 s45, {nloop}\nk2_loop:')
    for u in range(U): stage(pre+u,True,False,4*(NS-2)+min(xn(pre+u),xn(pre+u+U)),x15=XR.get(pre+u))
    a('s_sub_u32 s45, s45, 1\ns_cmp_lg_u32 s45, 0\ns_cbranch_scc1 k2_loop')
    if St.on: a('s_memtime s[88:89]'); stamp(a); a('s_sub_u32 s88, s88, s90')
    for st in range(pre+nloop*U,nst):
        left=nst-1-st
        ex=[f'buffer_load_dwordx4 v[116:119], v2, s[24:27], s46 offen offset:{1024*i}' for i in range(4)] if (not wd and left==1) else []
        stage(st,left>=NS-1,left==0,4*max(0,min(NS-2,left-1))+len(ex)+(xn(st) if left>=NS-1 else 0),ex)
    stamp(a)
    a('''s_lshl_b32 s32, s28, 3
    s_lshl_b32 s33, s31, 2
    s_add_u32 s32, s32, s33
    s_mul_i32 s32, s32, 112
    s_lshl_b32 s33, s29, 2
    s_add_u32 s32, s32, s33
    s_add_u32 s32, s32, s30
    s_lshl_b32 s32, s32, 11''')
    for pt in range(8):
        g=ACC+pt*16
        if 'agpr' in exp:
            g=16
            for i in range(16): a(f'v_accvgpr_read_b32 v{16+i}, a{pt*16+i}')
        for i in range(8): a(f'v_mul_f32 v{g+i}, v{g+i}, v{g+8+i}')
        d=80+pt*4
        for j in range(4): a(f'v_cvt_pk_bf16_f32 v{d+j}, v{g+2*j}, v{g+2*j+1}')
        a(f'buffer_store_dwordx4 {vr(d,4)}, v2, s[20:23], s32 offen offset:{1024*(pt&1)}{sc}')
        if pt&1: a('s_add_u32 s32, s32, 224*1024')
    stamp(a); stamp_end(a,1,1,True)
    a('s_endpgm\nk2_fft:')
    if fft: phaseB(a)
    a('k2_end:\ns_endpgm')
    return 256, 163840
def cmm(a,dre,dim,xre,xim,P,Q,R,T,dataA=True):
    def one(d,x,c,first):
        o=(vr(x,4),vr(c,4)) if dataA else (vr(c,4),vr(x,4))
        a(f'{M32} {vr(d,16)}, {o[0]}, {o[1]}, {"0" if first else vr(d,16)}')
    for s in range(2): one(dre,xre+4*s,P+4*s,s==0)
    for s in range(2): one(dre,xim+4*s,Q+4*s,False)
    for s in range(2): one(dim,xre+4*s,R+4*s,s==0)
    for s in range(2): one(dim,xim+4*s,T+4*s,False)
def phaseB(a):
    P,Q,R,T=16,24,32,40; C,SP,SN=48,56,64; TC,TS=72,88; X=104; D=120; WR,WI=152,168; WX=184; X2=188; D2=204
    a('s_waitcnt lgkmcnt(0)')
    srd(a,8,6,A0_OFF,4<<20); srd(a,12,40,0,2048*1026); srd(a,16,42,0,2048*1026); srd(a,20,6,T_OFF,4<<20)
    a('''v_lshrrev_b32 v2, 2, v0
    v_lshlrev_b32 v2, 11, v2
    v_and_b32 v3, 3, v0
    v_lshl_add_u32 v2, v3, 4, v2
    s_lshl_b32 s28, s2, 17
    s_lshl_b32 s29, s3, 8
    s_add_u32 s28, s28, s29
    s_lshl_b32 s29, s3, 14''')
    for al in range(4):
        for pl in range(2):
            for u in range(2):
                a(f's_add_u32 m0, s29, {al*4096+pl*2048+u*1024}\ns_add_u32 s30, s28, {pl*65536+u*32768+al*64}\nbuffer_load_dwordx4 v2, s[8:11], s30 offen lds')
    a('''v_lshrrev_b32 v4, 5, v0
    v_and_b32 v5, 31, v0
    v_lshlrev_b32 v6, 1, v5
    v_lshl_add_u32 v6, v4, 8, v6
    v_sub_u32 v7, 320, v6
    s_lshl_b32 s50, s3, 12
    s_add_u32 s50, s50, 131072
    s_and_b32 s51, s2, 1
    s_lshl_b32 s51, s51, 1
    s_sub_u32 s52, s50, s51
    v_add_u32 v7, s52, v7
    s_add_u32 s52, s52, 2048
    v_add_u32 v6, s52, v6
    v_lshlrev_b32 v8, 4, v0
    v_add_u32 v8, s51, v8
    v_and_b32 v9, 2, v0
    v_lshlrev_b32 v9, 9, v9
    v_and_b32 v10, 1, v0
    v_cmp_eq_u32 s[54:55], 1, v10
    s_mov_b64 s[56:57], 1
    s_lshl_b32 s31, s3, 8
    s_add_u32 s31, s31, s2
    s_mov_b32 s32, 4
    s_cmp_lg_u32 s2, 0
    s_cbranch_scc1 pb_0
    s_add_u32 s31, s31, 32
    s_cmp_lt_u32 s3, 4
    s_cbranch_scc1 pb_0
    s_sub_u32 s31, s31, 1056
    s_cmp_lg_u32 s3, 4
    s_cbranch_scc1 pb_0
    s_mov_b32 s32, 5
    pb_0:''')
    def wload():
        a('''s_sub_u32 s34, 2048, s31
        s_and_b32 s34, s34, 2047
        s_mul_i32 s33, s31, 1026
        s_mul_i32 s34, s34, 1026''')
        for i,(row,d) in enumerate(((34,12),(34,16),(33,12),(33,16))):
            a(f's_add_u32 m0, s50, {1024*i}\nbuffer_load_dwordx4 v8, {sr(d,4)}, s{row} offen lds')
        a(f'''v_add_u32 v10, s33, v9
        v_add_u32 v{WX+2}, s34, v9
        v_cndmask_b32 v10, v10, v{WX+2}, s[54:55]
        buffer_load_short_d16_hi v{WX}, v10, s[12:15], 0 offen
        buffer_load_short_d16_hi v{WX+1}, v10, s[16:19], 0 offen''')
    def wread():
        for r in range(16):
            for w,pl in ((WR,0),(WI,1)):
                if r<8: a(f'ds_read_u16_d16_hi v{w+r}, v6 offset:{pl*1024+(r&3)*64+(r>>2)*512}')
                else: a(f'ds_read_u16_d16_hi v{w+r}, v7 offset:{pl*1024+(3-(r&3))*64+(3-(r>>2))*512}')
    for i in range(36): a(f'v_mov_b32 v{WR+i}, 0')
    wload()
    def trig(step,base,kf,amp=None,fix=None,dst=(C,SP,SN)):
        for s in range(2):
            for e in range(0,8,2):
                b=base[s] if isinstance(base,tuple) else base
                a(f'v_fmamk_f32 v{D}, v{step}, {fx(kf(s,e))}, v{b}\nv_fmamk_f32 v{D+1}, v{step}, {fx(kf(s,e+1))}, v{b}')
                a(f'v_cos_f32 v{D+2}, v{D}\nv_cos_f32 v{D+3}, v{D+1}\nv_sin_f32 v{D+4}, v{D}\nv_sin_f32 v{D+5}, v{D+1}')
                if amp:
                    for i in range(2,6): a(f'v_mul_f32 v{D+i}, {fx(amp)}, v{D+i}')
                if fix and s==1 and e==0: fix()
                i=4*s+e//2
                a(f'v_cvt_pk_bf16_f32 v{dst[0]+i}, v{D+2}, v{D+3}\nv_cvt_pk_bf16_f32 v{dst[1]+i}, v{D+4}, v{D+5}\nv_xor_b32 v{dst[2]+i}, 0x80008000, v{dst[1]+i}')
    a('''v_lshlrev_b32 v11, 6, v5
    v_add_u32 v11, s2, v11
    s_cmp_lg_u32 s2, 0
    s_cbranch_scc1 pb_1
    v_add_u32 v12, 32, v11
    v_subrev_u32 v11, 1024, v11
    v_cmp_gt_u32 vcc, 16, v5
    v_cndmask_b32 v11, v11, v12, vcc
    pb_1:
    v_cvt_f32_u32 v11, v11
    v_mul_f32 v11, 0x3a000000, v11
    v_lshlrev_b32 v12, 3, v4
    v_cvt_f32_u32 v12, v12
    v_mul_f32 v12, v12, v11''')
    trig(11,12,lambda s,e:16*s+e,dst=(P,Q,R))
    for i in range(8): a(f'v_mov_b32 v{T+i}, v{P+i}')
    a('s_cmp_lg_u32 s2, 0\ns_cbranch_scc1 pb_2\nv_cmp_gt_u32 vcc, 16, v5\nv_cmp_eq_u32 s[46:47], 16, v5\nv_mov_b32 v13, 0xbf803f80')
    for i in range(8):
        a(f'''v_cndmask_b32 v{Q+i}, 0, v{P+i}, vcc
        v_cndmask_b32 v{T+i}, 0, v{R+i}, vcc
        v_cndmask_b32 v{P+i}, v{P+i}, 0, vcc
        v_cndmask_b32 v{R+i}, v{R+i}, 0, vcc
        v_cndmask_b32 v{R+i}, v{R+i}, v13, s[46:47]''')
    a('pb_2:')
    a('''v_cvt_f32_u32 v11, v5
    v_mul_f32 v11, 0x3d000000, v11
    v_lshlrev_b32 v12, 2, v4
    v_cvt_f32_u32 v12, v12
    v_mul_f32 v12, v12, v11''')
    trig(11,12,lambda s,e:16*s+(e&3)+8*(e>>2))
    a('v_mul_f32 v11, 0x3d000000, v11\nv_mul_f32 v12, 0x3d000000, v12')
    for r in range(16):
        a(f'v_fmamk_f32 v{D}, v11, {fx((r&3)+8*(r>>2))}, v12\nv_cos_f32 v{TC+r}, v{D}\nv_sin_f32 v{TS+r}, v{D}')
    trlane(a,2,0,14,512)
    a('''v_add_u32 v2, s29, v2
    s_lshl_b32 s30, s3, 4
    s_and_b32 s30, s30, 0x30
    s_or_b32 s35, s30, s29
    v_lshlrev_b32 v3, 6, v5
    v_bfe_u32 v14, v5, 1, 3
    v_xor_b32 v14, v14, v4
    v_lshl_add_u32 v3, v14, 3, v3
    v_and_b32 v12, 0xff, v3
    v_xor_b32 v3, s35, v3
    v_lshl_add_u32 v12, v5, 12, v12
    s_lshl_b32 s44, s3, 8
    s_or_b32 s44, s44, s30
    v_xor_b32 v12, s44, v12
    v_bfe_u32 v14, v0, 3, 1
    v_lshl_add_u32 v15, v4, 2, v14
    v_lshlrev_b32 v15, 3, v15
    v_xor_b32 v13, v2, v15
    v_xor_b32 v13, s30, v13
    v_lshl_add_u32 v15, v4, 1, v14
    v_lshlrev_b32 v15, 3, v15
    v_and_b32 v11, 0xff, v2
    v_xor_b32 v11, v11, v15
    v_bfe_u32 v14, v0, 2, 2
    v_lshl_add_u32 v14, v4, 2, v14
    v_lshl_add_u32 v11, v14, 12, v11
    v_xor_b32 v11, s44, v11''')
    def pack(d,x):
        for i in range(16): a(f'v_cvt_pk_bf16_f32 v{x+i}, v{d+2*i}, v{d+2*i+1}')
    XB=(X,X2); DB=(D,D2); O=236
    def srd_f(al):
        a(f's_waitcnt vmcnt({6+4*(3-al)})')
        for pl in range(2):
            for s in range(2):
                for j in range(2): a(f'ds_read_b64_tr_b16 {vr(XB[al&1]+8*pl+4*s+2*j,2)}, v2 offset:{al*4096+pl*2048+s*1024+j*256}')
    def swr_f(al):
        pack(DB[al&1],O)
        for g in range(4):
            a(f'v_xor_b32 v14, {al*64^((2*g^(al>>1))*8)}, v3')
            for pl in range(2): a(f'ds_write_b64 v14, {vr(O+8*pl+2*g,2)} offset:{al*4096+pl*2048}')
    def sstage(rdf,wrf):
        rdf(0)
        for al in range(4):
            a('s_waitcnt lgkmcnt(0)')
            if al<3: rdf(al+1)
            cmm(a,DB[al&1],DB[al&1]+16,XB[al&1],XB[al&1]+8,P,Q,R,T)
            if al>0: wrf(al-1)
        wrf(3)
    stamp(a); sstage(srd_f,swr_f); stamp(a)
    a('s_mov_b32 s45, 0\ns_waitcnt lgkmcnt(0)\ns_barrier\npb_row:')
    a('''s_and_b32 s46, s45, 3
    s_lshr_b32 s47, s46, 1
    s_lshl_b32 s47, s47, 3
    s_lshl_b32 s46, s46, 6
    s_or_b32 s46, s46, s47
    v_xor_b32 v15, s46, v11''')
    for s in range(2):
        for j in range(2):
            a(f'v_xor_b32 v14, {s*65536+j*32768+j*32}, v15')
            for pl in range(2): a(f'ds_read_b64_tr_b16 {vr(X+8*pl+4*s+2*j,2)}, v14 offset:{pl*2048}')
    def cmul(cr,ci,sg):
        for r in range(0,16,2):
            for q in range(2):
                i=r+q; n=sg(i)
                a(f'v_mul_f32 v{O+q}, v{D+i}, v{cr+i}\nv_mul_f32 v{O+2+q}, v{D+16+i}, v{cr+i}')
                a(f'v_fma_f32 v{O+q}, {"-" if n>0 else ""}v{D+16+i}, v{ci+i}, v{O+q}\nv_fma_f32 v{O+2+q}, {"" if n>0 else "-"}v{D+i}, v{ci+i}, v{O+2+q}')
            a(f'v_cvt_pk_bf16_f32 v{X+r//2}, v{O}, v{O+1}\nv_cvt_pk_bf16_f32 v{X+8+r//2}, v{O+2}, v{O+3}')
    a('s_waitcnt lgkmcnt(0)\ns_cmp_lg_u32 s45, 4\ns_cbranch_scc1 pb_6')
    for i in range(8): a(f'v_mov_b32 v{X+i}, 0')
    a('pb_6:')
    cmm(a,D,D+16,X,X+8,C,SP,SN,C)
    a('s_waitcnt vmcnt(0)'); wread()
    cmul(TC,TS,lambda i:-1)
    cmm(a,D,D+16,X,X+8,C,SP,SN,C,False)
    q='row_mask:0xf bank_mask:0xf'
    a(f'''v_add_f32_dpp v{O}, v{WX}, v{WX} quad_perm:[1,0,3,2] {q}
    v_subrev_f32_dpp v{O+1}, v{WX+1}, v{WX+1} quad_perm:[1,0,3,2] {q}
    s_add_u32 s31, s31, 64
    s_cmp_eq_u32 s45, 3
    s_cselect_b32 s31, 1024, s31
    v_mul_f32 v{O}, 0.5, v{O}
    v_mul_f32 v{O+1}, 0.5, v{O+1}
    s_waitcnt lgkmcnt(0)''')
    wload()
    a(f'''v_mov_b32_dpp v{O+2}, v{O} quad_perm:[3,3,3,3] {q}
    v_mov_b32_dpp v{O+3}, v{O+1} quad_perm:[3,3,3,3] {q}
    v_cndmask_b32 v{WR}, v{WR}, v{O}, s[56:57]
    v_cndmask_b32 v{WI}, v{WI}, v{O+1}, s[56:57]
    v_cndmask_b32 v{WR+8}, v{WR+8}, v{O+2}, s[56:57]
    v_cndmask_b32 v{WI+8}, v{WI+8}, v{O+3}, s[56:57]''')
    cmul(WR,WI,lambda i:1 if i<8 else -1)
    cmm(a,D,D+16,X,X+8,C,SN,SP,C)
    cmul(TC,TS,lambda i:1)
    cmm(a,D,D+16,X,X+8,C,SN,SP,C)
    a('v_xor_b32 v15, s46, v12')
    pack(D,X)
    a('s_cmp_eq_u32 s45, 4\ns_cbranch_scc1 pb_3')
    for g in range(4): a(f'v_xor_b32 v14, {16*g}, v15\nds_write_b64 v14, {vr(X+2*g,2)}')
    a('pb_3:\ns_sub_u32 s47, s32, s45\ns_cmp_eq_u32 s47, 5\ns_cbranch_scc1 pb_4')
    for g in range(4): a(f'v_xor_b32 v14, {16*g}, v15\nds_write_b64 v14, {vr(X+8+2*g,2)} offset:2048')
    a('pb_4:\ns_add_u32 s45, s45, 1\ns_cmp_lt_u32 s45, s32\ns_cbranch_scc1 pb_row')
    stamp(a)
    a('''s_add_u32 s47, s2, 1024
    s_cmp_eq_u32 s2, 0
    s_cselect_b32 s46, 32, s2
    s_cselect_b32 s47, 0, s47
    s_cselect_b32 s48, -1, 0
    s_mov_b32 s49, 0
    v_cvt_f32_u32 v11, v5
    v_mul_f32 v11, 0x3a000000, v11
    v_lshl_add_u32 v12, v4, 9, s46
    v_lshl_add_u32 v14, v4, 9, s47
    v_cvt_f32_u32 v12, v12
    v_cvt_f32_u32 v14, v14
    v_mul_f32 v12, v12, v11
    v_mul_f32 v14, v14, v11''')
    def fix():
        a(f'''v_lshlrev_b32 v15, 31, v5
        v_xor_b32 v15, {fx(-2.0**-21)}, v15
        v_mov_b32 v2, {fx(2.0**-21)}
        v_cndmask_b32 v{D+2}, v{D+2}, v2, s[48:49]
        v_cndmask_b32 v{D+4}, v{D+4}, v15, s[48:49]''')
    trig(11,(12,14),lambda s,e:64*e,amp=2.0**-20,fix=fix,dst=(P,R,Q))
    for i in range(8): a(f'v_mov_b32 v{T+i}, v{P+i}')
    a('s_cmp_lg_u32 s2, 0\ns_cbranch_scc1 pb_5')
    for i in range(4):
        a(f'v_mov_b32 v{R+i}, v{P+i}\nv_mov_b32 v{T+i}, v{Q+i}\nv_mov_b32 v{P+i}, 0\nv_mov_b32 v{Q+i}, 0\nv_mov_b32 v{R+4+i}, 0\nv_mov_b32 v{T+4+i}, 0')
    a('''pb_5:
    v_lshlrev_b32 v3, 6, v5
    v_bfe_u32 v14, v5, 1, 2
    v_lshl_add_u32 v3, v14, 4, v3
    v_lshl_add_u32 v3, v4, 3, v3
    v_add_u32 v3, s29, v3
    v_lshrrev_b32 v14, 4, v0
    v_bfe_u32 v15, v0, 2, 2
    v_lshlrev_b32 v11, 17, v14
    v_xor_b32 v14, v14, v15
    v_lshlrev_b32 v6, 12, v15
    v_lshl_add_u32 v6, v14, 6, v6
    v_and_b32 v14, 3, v0
    v_xor_b32 v14, v14, v4
    v_lshl_add_u32 v6, v14, 4, v6
    v_add_u32 v6, s29, v6
    v_xor_b32 v7, 32, v6
    v_and_b32 v14, 15, v0
    v_lshl_add_u32 v11, v14, 4, v11
    s_lshl_b32 s28, s2, 12
    s_lshl_b32 s30, s3, 8
    s_add_u32 s28, s28, s30
    s_waitcnt lgkmcnt(0)
    s_barrier''')
    def srd_i(al):
        for j in range(2):
            a(f'v_xor_b32 v14, {al*64^((2*j^(al>>1))*8)}, v13')
            for pl in range(2):
                for s in range(2): a(f'ds_read_b64_tr_b16 {vr(XB[al&1]+8*pl+4*s+2*j,2)}, v14 offset:{al*4096+pl*2048+s*1024+j*256}')
    def swr_i(al):
        pack(DB[al&1],O)
        for g in range(4):
            a(f'v_xor_b32 v14, {al*64^(g*16)}, v3')
            for pl in range(2): a(f'ds_write_b64 v14, {vr(O+8*pl+2*g,2)} offset:{al*4096+pl*2048}')
    stamp(a); sstage(srd_i,swr_i); stamp(a)
    for hz in range(2):
        for z in range(4*hz,4*hz+4):
            for pl in range(2): a(f'ds_read_b128 {vr(16+8*z+4*pl,4)}, v{6+(z&1)} offset:{pl*2048+z*256}')
        for z in range(4*hz,4*hz+4):
            for pl in range(2): a(f's_waitcnt lgkmcnt({7-2*(z&3)-pl})\nbuffer_store_dwordx4 {vr(16+8*z+4*pl,4)}, v11, s[20:23], s28 offen offset:{pl*2048}')
            a('s_add_u32 s28, s28, 0x80000')
    stamp(a); stamp_end(a,1)
```

```python
from k1 import *
def k3(a,NS=4,mp=0,fake=0,rot=0,wd=0):
    head(a,'k3_kernel')
    TL=NS*16384
    a('''s_cmp_ge_u32 s2, 256
    s_cbranch_scc1 k3_end''')
    stamp(a,True)
    a('''    s_load_dwordx2 s[4:5], s[0:1], 0
    s_load_dwordx4 s[36:39], s[0:1], 48
    s_load_dwordx2 s[6:7], s[0:1], 72
    v_lshrrev_b32 v1, 6, v0
    v_and_b32 v0, 63, v0
    v_readfirstlane_b32 s3, v1
    s_bfe_u32 s28, s2, 0x20001
    s_lshl_b32 s28, s28, 2
    s_bfe_u32 s29, s2, 0x20003
    s_add_u32 s28, s28, s29
    s_and_b32 s29, s2, 1
    s_lshl_b32 s29, s29, 3
    s_lshr_b32 s30, s2, 5
    s_add_u32 s29, s29, s30
    s_lshr_b32 s30, s3, 2
    s_and_b32 s31, s3, 3''')
    if mp: a('s_and_b32 s28, s2, 7\ns_lshl_b32 s28, s28, 1\ns_bfe_u32 s29, s2, 0x10003\ns_add_u32 s28, s28, s29\ns_lshr_b32 s29, s2, 4')
    a('''v_lshrrev_b32 v4, 5, v0
    v_bfe_u32 v3, v0, 2, 2
    v_lshl_add_u32 v2, v4, 2, v3
    v_lshlrev_b32 v2, 11, v2
    v_bfe_u32 v3, v0, 4, 1
    v_lshl_add_u32 v2, v3, 6, v2
    v_and_b32 v3, 3, v0
    v_lshl_add_u32 v2, v3, 4, v2
    v_and_b32 v3, 32, v0
    v_xor_b32 v2, v2, v3
    s_lshl_b32 s32, s29, 7
    s_lshl_b32 s33, s31, 15
    s_add_u32 s32, s32, s33
    v_add_u32 v2, s32, v2
    v_add_u32 v5, 0x3c00, v2
    v_lshlrev_b32 v6, 4, v0
    s_lshl_b32 s32, s28, 2
    s_add_u32 s32, s32, s31
    s_mul_i32 s40, s32, 224*1024
    s_mul_i32 s33, s30, 112*1024
    s_add_u32 s40, s40, s33
    s_mul_i32 s41, s30, 1792*2048
    s_lshl_b32 s42, s3, 11
    s_lshl_b32 s43, s28, 1
    s_add_u32 s33, s43, s30
    s_lshl_b32 s33, s33, 17''')
    a('''s_lshr_b32 s34, s31, 1
    s_add_u32 s43, s43, s34
    s_and_b32 s35, s31, 1
    s_lshl_b32 s35, s35, 5
    v_and_b32 v8, 15, v0
    v_add_u32 v8, s35, v8
    v_lshrrev_b32 v7, 2, v0
    v_add_u32 v7, s35, v7
    v_lshlrev_b32 v7, 16, v7
    v_and_b32 v3, 3, v0
    v_lshl_add_u32 v7, v3, 4, v7
    s_mov_b32 s46, 0x100000
    s_lshl_b32 s43, s43, 11
    s_lshl_b32 s35, s29, 7
    s_add_u32 s43, s43, s35
    s_lshl_b32 s35, s30, 6
    s_add_u32 s43, s43, s35
    v_add_u32 v7, s43, v7
    s_waitcnt lgkmcnt(0)''')
    srd(a,8,6,H_OFF,2048*3584*2); srd(a,12,36,0,3584*2048); srd(a,16,6,T_OFF,4<<20); srd(a,20,4,0,4<<20); srd(a,24,38,0,4<<20)
    if fake: a('s_mul_i32 s32, s29, 458752\ns_lshl_b32 s41, s31, 11\ns_add_u32 s32, s32, s41\nv_add_u32 v2, s32, v6\nv_mov_b32 v5, v2\ns_mul_i32 s41, s30, 1792*128\ns_mov_b32 s33, 0')
    if wd: srd(a,12,6,WD_OFF,3584*2048); a('s_mul_i32 s32, s29, 458752\ns_lshl_b32 s41, s31, 11\ns_add_u32 s32, s32, s41\ns_mul_i32 s41, s30, 1792*128\ns_add_u32 s41, s41, s32')
    if rot:
        a(f'''s_lshr_b32 s47, s2, 5
        s_bfe_u32 s48, s2, 0x20003
        s_mul_i32 s48, s48, {rot[1]}
        s_mul_i32 s47, s47, {rot[2]}
        s_add_u32 s47, s47, s48
        s_cmp_ge_u32 s47, {rot[0]}
        s_cselect_b32 s48, {rot[0]}, 0
        s_sub_u32 s47, s47, s48
        s_cmp_ge_u32 s47, {rot[0]}
        s_cselect_b32 s48, {rot[0]}, 0
        s_sub_u32 s47, s47, s48
        s_mov_b32 s49, s47
        s_mov_b32 s48, 0
        s_mov_b32 s50, s40
        s_mov_b32 s51, s41
        s_lshl_b32 s52, s47, 12
        s_add_u32 s40, s40, s52
        s_lshl_b32 s52, s47, {13 if fake else 17}
        s_add_u32 s41, s41, s52''')
    HF=64
    def loads(slot):
        r=[]
        r.append(f's_add_u32 m0, s42, {slot*16384}\nbuffer_load_dwordx4 v2, s[12:15], s41 offen lds')
        r.append('buffer_load_dwordx4 v5, s[12:15], s41 offen offset:1024 lds\ns_add_u32 s41, s41, %d'%(64*128 if fake else 64*2048))
        if wd: r=[x.replace('v2,','v6,').replace('v5,','v6,').replace(str(64*2048),str(64*128)) for x in r]
        for s in range(4):
            r.append(f'buffer_load_dwordx4 {vr(HF+slot*16+4*s,4)}, v6, s[8:11], s40 offen offset:{1024*s}'+('\ns_add_u32 s40, s40, 4096' if s==3 else ''))
        if rot:
            r[1]=r[1].split('\n')[0]
            r[5]=r[5].split('\n')[0]+f'''
            s_add_u32 s47, s47, 1
            s_cmp_eq_u32 s47, {rot[0]}
            s_cselect_b32 s47, 0, s47
            s_cmp_eq_u32 s47, s49
            s_cselect_b32 s52, {rot[0]}, 0
            s_add_u32 s48, s48, s52
            s_add_u32 s52, s48, s47
            s_lshl_b32 s53, s52, 12
            s_add_u32 s40, s50, s53
            s_lshl_b32 s53, s52, {13 if fake else 17}
            s_add_u32 s41, s51, s53'''
        return r
    for st in range(NS-1):
        for x in loads(st): a(x)
        if st==0:
            a(f'''s_add_u32 m0, s42, {TL}
            buffer_load_dwordx4 v2, s[16:19], s33 offen lds
            buffer_load_dwordx4 v5, s[16:19], s33 offen offset:1024 lds
            buffer_load_dwordx4 v[56:59], v7, s[20:23], 0 offen
            buffer_load_dwordx4 v[60:63], v7, s[20:23], s46 offen''')
    a(f'''v_lshrrev_b32 v4, 4, v0
    v_lshlrev_b32 v9, 9, v4
    v_and_b32 v3, 1, v4
    v_lshl_add_u32 v9, v3, 5, v9
    v_bfe_u32 v3, v0, 2, 2
    v_lshl_add_u32 v9, v3, 6, v9
    v_and_b32 v3, 3, v0
    v_lshl_add_u32 v9, v3, 3, v9
    s_lshl_b32 s35, s34, 13
    s_lshl_b32 s44, s30, 8
    s_add_u32 s35, s35, s44
    s_add_u32 s35, s35, {TL}
    v_add_u32 v1, s35, v9
    s_lshl_b32 s35, s30, 13
    v_add_u32 v9, s35, v9
    v_xor_b32 v10, 32, v9''')
    WF=HF+NS*16
    GF=WF+32
    a('v_lshlrev_b32 v4, 1, v4\nv_cvt_f32_u32 v4, v4\nv_cmp_gt_u32 vcc, 16, v0')
    for ph in range(2):
        a(f'''v_add_u32 v11, {16*ph}, v8
        v_cvt_f32_u32 v11, v11
        v_mul_f32 v11, 0x3c800000, v11
        v_mul_f32 v12, v4, v11
        v_add_f32 v13, 0x3e800000, v12''')
        for s in range(2):
            for j in range(2):
                for e2 in range(2):
                    k=16*s+8*j+e2
                    a(f'v_fmamk_f32 v14, v11, {fx(k)}, v12\nv_fmamk_f32 v15, v11, {fx(k)}, v13')
                    if k==0: a('v_mul_f32 v3, 0x42000000, v11\nv_cndmask_b32 v15, v15, v3, vcc')
                    a(f'v_cos_f32 v14, v14\nv_cos_f32 v15, v15\nv_cvt_pk_bf16_f32 v{GF+8*ph+4*s+2*j+e2}, v14, v15')
    for i in range(32): a(f'v_mov_b32 v{16+i}, 0')
    def rd(slot,s):
        return [f'ds_read_b64_tr_b16 {vr(WF+s*16+nb*8+t*4+j*2,2)}, v{9+t} offset:{slot*16384+(8*s+4*j)*512+nb*256}' for nb in range(2) for t in range(2) for j in range(2)]
    stamp(a); a(f's_waitcnt vmcnt({6*(NS-2)+4})\ns_barrier'); stamp(a)
    for x in rd(0,0): a(x)
    def stage(slot,ld,last,vm):
        L=loads((slot+NS-1)%NS) if ld else []
        for s in range(2):
            R=rd(slot,1) if s==0 else ([] if last else rd((slot+1)%NS,0))
            if s==0 and L: y=L[0].split('\n'); a(y[0]); L[0]=y[1]
            a(f's_waitcnt vmcnt({vm}) lgkmcnt(0)\ns_barrier' if s==1 and not last else 's_waitcnt lgkmcnt(0)')
            for nb in range(2):
                for t in range(2):
                    for ph in range(2):
                        acc=vr(16+16*nb+8*ph+4*t,4)
                        a(f'v_mfma_f32_16x16x32_bf16 {acc}, {vr(WF+s*16+nb*8+t*4,4)}, {vr(HF+slot*16+8*s+4*ph,4)}, {acc}')
                        if R: a(R.pop(0)); a(R.pop(0))
                        elif L: a(L.pop(0))
            while L: a(L.pop(0))
    nst=28; nloop=(nst-(NS-1))//NS; rem=nst-nloop*NS
    a(f's_mov_b32 s45, {nloop}\nk3_loop:')
    for u in range(NS): stage(u,True,False,6*(NS-2))
    a('s_sub_u32 s45, s45, 1\ns_cmp_lg_u32 s45, 0\ns_cbranch_scc1 k3_loop')
    for u in range(rem):
        left=rem-1-u
        stage(u%NS,left>=NS-1,left==0,6*max(0,min(NS-2,left-1)))
    stamp(a)
    a('v_xor_b32 v2, 32, v1')
    for t in range(2):
        for s in range(2):
            for j in range(2): a(f'ds_read_b64_tr_b16 {vr(HF+8*t+4*s+2*j,2)}, v{1+t} offset:{(8*s+4*j)*512}')
    a('''s_nop 0
    s_lshl_b32 s35, s3, 12
    v_add_u32 v11, s35, v6
    s_xor_b32 s35, s35, 0x4000
    v_add_u32 v12, s35, v6
    s_cmp_eq_u32 s30, 0
    s_cbranch_scc1 k3_a''')
    for i in range(4): a(f'ds_write_b128 v11, {vr(16+4*i,4)} offset:{1024*i}')
    for i in range(16): a(f'v_mov_b32 v{16+i}, v{32+i}')
    a('s_branch k3_b\nk3_a:\ns_nop 7')
    for i in range(4): a(f'ds_write_b128 v11, {vr(32+4*i,4)} offset:{1024*i}')
    a('k3_b:\ns_waitcnt lgkmcnt(0)')
    SA=HF+16
    for s in range(2):
        for ph in range(2):
            for t in range(2):
                acc=vr(SA+8*ph+4*t,4); a(f'v_mfma_f32_16x16x32_bf16 {acc}, {vr(HF+8*t+4*s,4)}, {vr(GF+8*ph+4*s,4)}, {"0" if s==0 else acc}')
    a('s_barrier')
    for i in range(4): a(f'ds_read_b128 {vr(32+4*i,4)}, v12 offset:{1024*i}')
    a('''s_mul_i32 s35, s3, 2560
    s_add_u32 s35, s35, 32768
    v_and_b32 v13, 15, v0
    v_mul_u32_u24 v13, 80, v13
    v_lshrrev_b32 v14, 4, v0
    v_lshl_add_u32 v13, v14, 3, v13
    v_add_u32 v13, s35, v13
    v_lshrrev_b32 v14, 2, v0
    v_mul_u32_u24 v14, 80, v14
    v_and_b32 v3, 3, v0
    v_lshl_add_u32 v14, v3, 4, v14
    v_add_u32 v14, s35, v14''')
    for pp in range(2):
        a(f's_waitcnt lgkmcnt({2+pp})')
        R=range(8*pp,8*pp+8)
        for i in R: a(f'v_add_f32 v{16+i}, v{16+i}, v{32+i}')
        for i in R: a(f'v_mul_f32 v{32+i}, 0xbfb8aa3b, v{16+i}')
        for i in R: a(f'v_exp_f32 v{32+i}, v{32+i}')
        for i in R: a(f'v_add_f32 v{32+i}, 1.0, v{32+i}')
        for i in R: a(f'v_rcp_f32 v{32+i}, v{32+i}')
        for i in R: a(f'v_mul_f32 v{16+i}, v{16+i}, v{SA+i}')
        for i in R: a(f'v_mul_f32 v{16+i}, v{16+i}, v{32+i}')
        d=48+4*pp
        for j in range(4): a(f'v_cvt_pk_bf16_f32 v{d+j}, v{16+8*pp+2*j}, v{17+8*pp+2*j}')
        for t in range(2): a(f'ds_write_b64 v13, {vr(d+2*t,2)} offset:{pp*1280+t*32}')
        a(f'ds_read_b128 {vr(HF+4*pp,4)}, v14 offset:{pp*1280}')
    for pp in range(2):
        a(f's_waitcnt lgkmcnt({3-3*pp})')
        for j in range(4):
            x=56+4*pp+j; d=HF+4*pp+j
            a(f'''v_lshlrev_b32 v16, 16, v{x}
            v_and_b32 v17, 0xffff0000, v{x}
            v_lshlrev_b32 v18, 16, v{d}
            v_and_b32 v19, 0xffff0000, v{d}
            v_add_f32 v16, v16, v18
            v_add_f32 v17, v17, v19
            v_cvt_pk_bf16_f32 v{x}, v16, v17''')
        a(f'buffer_store_dwordx4 {vr(56+4*pp,4)}, v7, s[24:27], {"s46" if pp else 0} offen')
    stamp(a); stamp_end(a,2)
    a('k3_end:\ns_endpgm')
    return GF+16, TL+16384
```

```python
from k1 import *
def k3s(a,NS=4,mp=0,psc=' sc1',order=0,txl=1,late=1,e3=1,tail=0):
    head(a,'k3_kernel')
    TL=NS*32768
    a('''s_cmp_ge_u32 s2, 256
    s_cbranch_scc1 k3_end''')
    stamp(a,True)
    a('''    s_load_dwordx2 s[4:5], s[0:1], 0
    s_load_dwordx4 s[36:39], s[0:1], 48
    s_load_dwordx2 s[6:7], s[0:1], 72
    v_lshrrev_b32 v1, 6, v0
    v_and_b32 v0, 63, v0
    v_readfirstlane_b32 s3, v1
    s_and_b32 s47, s2, 1
    s_bfe_u32 s28, s2, 0x10001
    s_lshl_b32 s28, s28, 3
    s_bfe_u32 s29, s2, 0x30003
    s_add_u32 s28, s28, s29
    s_bfe_u32 s29, s2, 0x10002
    s_lshl_b32 s29, s29, 2
    s_lshr_b32 s30, s2, 6
    s_add_u32 s29, s29, s30
    s_lshl_b32 s29, s29, 1
    s_add_u32 s29, s29, s47
    s_lshr_b32 s30, s3, 2
    s_and_b32 s31, s3, 3''')
    if mp: a('s_bfe_u32 s28, s2, 0x20001\ns_lshl_b32 s28, s28, 2\ns_bfe_u32 s29, s2, 0x20003\ns_add_u32 s28, s28, s29\ns_lshr_b32 s29, s2, 5\ns_lshl_b32 s29, s29, 1\ns_add_u32 s29, s29, s47')
    a('s_lshl_b32 s47, s47, 1\ns_add_u32 s47, s47, s30')
    a('''v_lshrrev_b32 v4, 5, v0
    v_bfe_u32 v3, v0, 2, 2
    v_lshl_add_u32 v2, v4, 2, v3
    v_lshlrev_b32 v2, 11, v2
    v_bfe_u32 v3, v0, 4, 1
    v_lshl_add_u32 v2, v3, 6, v2
    v_and_b32 v3, 3, v0
    v_lshl_add_u32 v2, v3, 4, v2
    v_and_b32 v3, 32, v0
    v_xor_b32 v2, v2, v3
    s_lshl_b32 s32, s29, 7
    s_lshl_b32 s33, s31, 15
    s_add_u32 s32, s32, s33
    v_add_u32 v2, s32, v2
    v_add_u32 v5, 0x3c00, v2
    v_lshlrev_b32 v6, 4, v0
    s_lshl_b32 s32, s28, 2
    s_add_u32 s32, s32, s31
    s_mul_i32 s40, s32, 224*1024
    s_mul_i32 s33, s47, 56*1024
    s_add_u32 s40, s40, s33
    s_lshl_b32 s42, s3, 11
    s_lshl_b32 s43, s28, 1
    s_add_u32 s33, s43, s30
    s_lshl_b32 s33, s33, 17''')
    a('''s_lshr_b32 s34, s31, 1
    s_add_u32 s43, s43, s34
    s_and_b32 s35, s31, 1
    s_lshl_b32 s35, s35, 5
    v_and_b32 v8, 15, v0
    v_add_u32 v8, s35, v8
    v_lshrrev_b32 v7, 2, v0
    v_add_u32 v7, s35, v7
    v_lshlrev_b32 v7, 16, v7
    v_and_b32 v3, 3, v0
    v_lshl_add_u32 v7, v3, 4, v7
    s_mov_b32 s46, 0x100000
    s_lshl_b32 s43, s43, 11
    s_lshl_b32 s35, s29, 7
    s_add_u32 s43, s43, s35
    s_lshl_b32 s35, s30, 6
    s_add_u32 s43, s43, s35
    v_add_u32 v7, s43, v7
    s_waitcnt lgkmcnt(0)''')
    srd(a,8,6,H_OFF,2048*3584*2); srd(a,12,6,WD_OFF,3584*2048); srd(a,52,6,XN_OFF,4<<20); srd(a,16,6,T_OFF,4<<20); srd(a,20,4,0,4<<20); srd(a,24,38,0,4<<20)
    a('''s_lshl_b32 s41, s31, 11
    s_mul_i32 s32, s47, 896*128
    s_add_u32 s32, s32, s41
    s_mul_i32 s41, s29, 458752
    s_add_u32 s41, s41, s32
    s_xor_b32 s48, s29, 1
    s_mul_i32 s48, s48, 458752
    s_add_u32 s48, s48, s32
    s_lshl_b32 s49, s2, 3
    s_add_u32 s49, s49, s3
    s_lshl_b32 s49, s49, 11
    s_xor_b32 s50, s49, 0x4000''')
    XV=80; HF=88
    def loads(slot):
        r=[]
        for hf,o in ((1,48),(0,41)):
            r.append(f's_add_u32 m0, s42, {slot*32768+hf*16384}\nbuffer_load_dwordx4 v6, s[12:15], s{o} offen lds')
            r.append(f'buffer_load_dwordx4 v6, s[12:15], s{o} offen offset:1024 lds\ns_add_u32 s{o}, s{o}, 8192')
        for s in range(4):
            r.append(f'buffer_load_dwordx4 {vr(HF+slot*16+4*s,4)}, v6, s[8:11], s40 offen offset:{1024*s}'+('\ns_add_u32 s40, s40, 4096' if s==3 else ''))
        return r
    TX=[f's_add_u32 m0, s42, {TL}\nbuffer_load_dwordx4 v2, s[16:19], s33 offen lds','buffer_load_dwordx4 v5, s[16:19], s33 offen offset:1024 lds',
        'buffer_load_dwordx4 v[80:83], v7, s[20:23], 0 offen','buffer_load_dwordx4 v[84:87], v7, s[20:23], s46 offen']
    PL=[loads(st) for st in range(NS-1)]
    if not txl: PL[-1]+=TX
    n0=0 if txl else 4
    stamp(a)
    for st in range(1 if order else NS-1):
        for x in PL.pop(0): a(x)
    stamp(a)
    a(f'''v_lshrrev_b32 v4, 4, v0
    v_lshlrev_b32 v9, 9, v4
    v_and_b32 v3, 1, v4
    v_lshl_add_u32 v9, v3, 5, v9
    v_bfe_u32 v3, v0, 2, 2
    v_lshl_add_u32 v9, v3, 6, v9
    v_and_b32 v3, 3, v0
    v_lshl_add_u32 v9, v3, 3, v9
    s_lshl_b32 s35, s34, 13
    s_lshl_b32 s44, s30, 8
    s_add_u32 s35, s35, s44
    s_add_u32 s35, s35, {TL}
    v_add_u32 v1, s35, v9
    s_lshl_b32 s35, s30, 13
    v_add_u32 v9, s35, v9
    v_xor_b32 v10, 32, v9''')
    WF=HF+NS*16
    GF=WF+32
    a('v_lshlrev_b32 v4, 1, v4\nv_cvt_f32_u32 v4, v4\nv_cmp_gt_u32 vcc, 16, v0')
    for ph in range(2):
        a(f'''v_add_u32 v11, {16*ph}, v8
        v_cvt_f32_u32 v11, v11
        v_mul_f32 v11, 0x3c800000, v11
        v_mul_f32 v12, v4, v11
        v_add_f32 v13, 0x3e800000, v12''')
        for s in range(2):
            for j in range(2):
                for e2 in range(2):
                    k=16*s+8*j+e2
                    a(f'v_fmamk_f32 v14, v11, {fx(k)}, v12\nv_fmamk_f32 v15, v11, {fx(k)}, v13')
                    if k==0: a('v_mul_f32 v3, 0x42000000, v11\nv_cndmask_b32 v15, v15, v3, vcc')
                    a(f'v_cos_f32 v14, v14\nv_cos_f32 v15, v15\nv_cvt_pk_bf16_f32 v{GF+8*ph+4*s+2*j+e2}, v14, v15')
        if PL:
            for x in PL.pop(0): a(x)
    for i in range(64): a(f'v_mov_b32 v{16+i}, 0')
    BR=GF+16
    a(f'v_add_u32 v{BR}, s44, v9')
    for q in range(1,8): a(f'v_xor_b32 v{BR+q}, {(q&1)*32+(q>>1&1)*256+(q>>2)*65536}, v{BR}')
    a('''s_lshl_b32 s35, s3, 12
    s_add_u32 s35, s35, 65536
    v_add_u32 v11, s35, v6
    v_xor_b32 v12, 0x4000, v11
    v_xor_b32 v10, 32, v1
    s_mov_b32 s56, 0x6f800000
    v_mov_b32 v15, 0x60000000
    s_movk_i32 s58, 0x6000''')
    def rd(slot,u):
        hf,s=1-(u>>1),u&1
        return [f'ds_read_b64_tr_b16 {vr(WF+s*16+nb*8+t*4+j*2,2)}, v{BR+t+2*nb+4*(slot>>1)} offset:{(slot&1)*32768+hf*16384+(8*s+4*j)*512}' for nb in range(2) for t in range(2) for j in range(2)]
    stamp(a); a(f's_waitcnt vmcnt({8*(NS-2)+n0})\ns_barrier'); stamp(a)
    for x in rd(0,0): a(x)
    def unit(slot,u,R,L,vm=None,F=[],nbs=(0,1),w=True):
        hf,s=1-(u>>1),u&1; F=list(F)
        if w: a('s_waitcnt lgkmcnt(0)' if vm is None else f's_waitcnt vmcnt({vm}) lgkmcnt(0)\ns_barrier')
        for nb in nbs:
            for t in range(2):
                for ph in range(2):
                    acc=vr(16+32*hf+16*nb+8*ph+4*t,4)
                    if not R and L and L[0].startswith('s_add_u32 m0'): y=L[0].split('\n'); a(y[0]); L[0]=y[1]
                    a(f'v_mfma_f32_16x16x32_bf16 {acc}, {vr(WF+s*16+nb*8+t*4,4)}, {vr(HF+slot*16+8*s+4*ph,4)}, {acc}')
                    if R: a(R.pop(0)); a(R.pop(0))
                    elif L: a(L.pop(0))
                    if F: a(F.pop(0))
    def stage(slot,L,vm):
        for u in range(4): unit(slot,u,rd(slot,u+1) if u<3 else rd((slot+1)%NS,0),L,vm if u==3 else None)
        assert not L
    stage(0,loads(3),16+n0); stage(1,loads(0),16+n0)
    a(f's_mov_b32 s45, 2\nk3_loop:')
    for u in range(NS): stage((u+2)%NS,loads((u+1)%NS),16)
    a('s_sub_u32 s45, s45, 1\ns_cmp_lg_u32 s45, 0\ns_cbranch_scc1 k3_loop')
    stage(2,loads(1),16)
    TF=HF+48; SA=HF+32
    WR=[f'ds_write_b128 v11, {vr(64+4*i,4)} offset:{1024*i}' for i in range(4)]; RD=[f'ds_read_b128 {vr(64+4*i,4)}, v12 offset:{1024*i}' for i in range(4)]
    F=[]
    for i in range(2):
        r=48+8*i
        F.append('\n'.join(f'v_add_f32 v{q}, v{q}, v{q+16}' for q in range(r,r+4)))
        F.append('\n'.join(f'v_add_f32 v{q}, v{q}, v{q+16}' for q in range(r+4,r+8)))
        F.append(f'v_mul_f32 v{r}, s56, v{r}\nv_cmp_lt_f32 vcc, |v{r}|, v15\nv_cvt_pk_bf16_f32 v{r+17}, v{r+2}, v{r+3}\nv_cndmask_b32 v{r}, v{r}, v15, vcc')
        F.append(f'v_cvt_pk_bf16_f32 v{r+18}, v{r+4}, v{r+5}\nv_cvt_pk_bf16_f32 v{r+19}, v{r+6}, v{r+7}\nv_cvt_pk_bf16_f32 v{r+16}, v{r}, v{r+1}\nbuffer_store_dwordx4 {vr(r+16,4)}, v6, s[52:55], s50 offen offset:{1024*i} sc1')
    TR=[f'ds_read_b64_tr_b16 {vr(TF+8*t+4*s+2*j,2)}, v{1+9*t} offset:{(8*s+4*j)*512}' for t in range(2) for s in range(2) for j in range(2)]
    PO=[f'buffer_load_dwordx4 {vr(56+4*i,4)}, v6, s[52:55], s49 offen offset:{1024*i}{psc}' for i in range(2)]
    W2=[f'ds_write_b128 v11, {vr(32+4*i,4)} offset:{32768+1024*i}' for i in (0,2,1,3)]; R2=[f'ds_read_b128 {vr(32+4*i,4)}, v12 offset:{32768+1024*i}' for i in range(4)]
    def phc(L):
        for s in range(2):
            for ph in range(2):
                for t in range(2):
                    acc=vr(SA+8*ph+4*t,4); a(f'v_mfma_f32_16x16x32_bf16 {acc}, {vr(TF+8*t+4*s,4)}, {vr(GF+8*ph+4*s,4)}, {"0" if s==0 else acc}')
                    if s==1 and L: a(L.pop(0))
    unit(3,0,rd(3,1),list(TX)); unit(3,1,rd(0,0),[],12)
    unit(0,0,rd(0,1),[]); unit(0,1,rd(1,0),[],4); unit(1,0,rd(1,1),[])
    unit(1,1,rd(3,2),[]); unit(3,2,rd(3,3),WR); unit(3,3,RD+rd(0,2),[],0); unit(0,2,rd(0,3),[],None,F)
    if tail:
        unit(0,3,rd(1,2)+TR,[]); unit(1,2,rd(1,3),[],nbs=(1,))
        if tail==1: phc([]); unit(1,3,[],[],nbs=(1,)); unit(1,2,[],W2,nbs=(0,),w=False); unit(1,3,R2+PO,[],63,nbs=(0,))
        else: unit(1,2,[],[],nbs=(0,),w=False); unit(1,3,[],[],nbs=(1,)); unit(1,3,[],W2,nbs=(0,),w=False); a('s_waitcnt lgkmcnt(0)\ns_barrier\n'+'\n'.join(R2+PO)); phc([])
        stamp(a)
    else:
        unit(0,3,rd(1,2),[]); unit(1,2,rd(1,3),[]); unit(1,3,TR,[])
        stamp(a)
        a('s_waitcnt lgkmcnt(0)'); phc(W2)
        a('s_waitcnt lgkmcnt(0)\ns_barrier\n'+'\n'.join(R2+PO))
    a('''s_mul_i32 s35, s3, 2560
    s_add_u32 s35, s35, 32768
    v_and_b32 v13, 15, v0
    v_mul_u32_u24 v13, 80, v13
    v_lshrrev_b32 v14, 4, v0
    v_lshl_add_u32 v13, v14, 3, v13
    v_add_u32 v13, s35, v13
    v_lshrrev_b32 v14, 2, v0
    v_mul_u32_u24 v14, 80, v14
    v_and_b32 v3, 3, v0
    v_lshl_add_u32 v14, v3, 4, v14
    v_add_u32 v14, s35, v14''')
    a('s_waitcnt lgkmcnt(0)')
    for i in range(16): a(f'v_add_f32 v{16+i}, v{16+i}, v{32+i}')
    stamp(a)
    a('''s_mov_b32 s51, 0x40000
    k3_poll:
    s_waitcnt vmcnt(0)
    v_and_b32 v3, v56, v60
    v_and_b32 v3, s58, v3
    v_cmp_ne_u32 vcc, s58, v3
    s_sub_u32 s51, s51, 1
    s_cbranch_scc1 k3_got
    s_cbranch_vccz k3_got''')
    for x in PO: a(x)
    a('s_branch k3_poll\nk3_got:')
    for i in range(8): a(f'v_lshlrev_b32 v{64+2*i}, 16, v{56+i}\nv_and_b32 v{65+2*i}, 0xffff0000, v{56+i}')
    a('v_mul_f32 v64, 0x0f800000, v64\nv_mul_f32 v72, 0x0f800000, v72')
    stamp(a)
    for pp in range(2):
        R=range(8*pp,8*pp+8)
        for i in R: a(f'v_add_f32 v{16+i}, v{16+i}, v{64+i}')
        for i in R: a(f'v_mul_f32 v{32+i}, 0xbfb8aa3b, v{16+i}')
        for i in R: a(f'v_exp_f32 v{32+i}, v{32+i}')
        for i in R: a(f'v_add_f32 v{32+i}, 1.0, v{32+i}')
        for i in R: a(f'v_rcp_f32 v{32+i}, v{32+i}')
        for i in R: a(f'v_mul_f32 v{16+i}, v{16+i}, v{SA+i}')
        for i in R: a(f'v_mul_f32 v{16+i}, v{16+i}, v{32+i}')
        d=48+4*pp
        for j in range(4): a(f'v_cvt_pk_bf16_f32 v{d+j}, v{16+8*pp+2*j}, v{17+8*pp+2*j}')
        for t in range(2): a(f'ds_write_b64 v13, {vr(d+2*t,2)} offset:{pp*1280+t*32}')
        a(f'ds_read_b128 {vr(HF+4*pp,4)}, v14 offset:{pp*1280}')
    for pp in range(2):
        a(f's_waitcnt lgkmcnt({3-3*pp})')
        for j in range(4):
            x=XV+4*pp+j; d=HF+4*pp+j
            a(f'''v_lshlrev_b32 v16, 16, v{x}
            v_and_b32 v17, 0xffff0000, v{x}
            v_lshlrev_b32 v18, 16, v{d}
            v_and_b32 v19, 0xffff0000, v{d}
            v_add_f32 v16, v16, v18
            v_add_f32 v17, v17, v19
            v_cvt_pk_bf16_f32 v{x}, v16, v17''')
        a(f'buffer_store_dwordx4 {vr(XV+4*pp,4)}, v7, s[24:27], {"s46" if pp else 0} offen')
    stamp(a); stamp_end(a,2)
    a('k3_end:\ns_endpgm')
    return BR+8, TL+16384
```

```python
import sys
from k1 import *
from k2 import k2
from k3 import k3
from k3s import k3s
DEF=dict(k1=dict(rows=512,early=0,at=16),k2=dict(wd=((8,10,12,14),(15,16,17,18)),pf=512,pfst=(3,4,5,6)),k3s=dict(tail=2))
def build(path,**kw):
    a=Asm(); St.on='stamp' in path
    k1(a,**kw.get('k1',{})); v2,l2=k2(a,**kw.get('k2',{})); v3,l3=k3s(a,**kw['k3s']) if 'k3s' in kw else k3(a,**kw.get('k3',{}))
    if kw.get('al',True): print('align',align8(a))
    ref=open('recurrent_scan__spectral_gfnet__glu_gated_bilinear__prompt.s.ref').read().split('\n')
    hdr='\n'.join(ref[:11])+'\n'
    hdr+='; @launch kernel=k1_kernel grid=(256,1,1) block=(256,1,1) lds=34816\n'
    hdr+=f'; @launch kernel=k2_kernel grid=(256,1,1) block=(512,1,1) lds={l2}\n'
    hdr+=f'; @launch kernel=k3_kernel grid=(256,1,1) block=(512,1,1) lds={l3}\n'
    hdr+='.amdgcn_target "amdgcn-amd-amdhsa--gfx950"\n.text\n'
    t=hdr+a.text()+'.section .rodata,"a"\n'+desc('k1_kernel',212)+desc('k2_kernel',v2,kw.get('acc2'))+desc('k3_kernel',v3)
    open(path,'w').write(t); print(path,len(a.L),'lines, nops',a.nops)
if __name__=='__main__':
    build('recurrent_scan__spectral_gfnet__glu_gated_bilinear__prompt.s',**DEF)
    build('stamp.s',**DEF)
```

```python
import sys
from k1 import *
from k2 import k2
from k3 import k3
from k3s import k3s
DEF=dict(k1=dict(rows=256,early=0,at=16,fuse=1,one=5),k2=dict(wd=((11,12,13,14),(15,16,17,18)),pf=256,pfst=(3,4,5,6,7,8),fuse=22,early=1,one=1,wfirst=1),k3s=dict(tail=2,exp='spread snake',mp=1,fuse=4,hsc=' sc1',wsc=' sc1'))
def build(path,**kw):
    a=Asm(); St.on='stamp' in path
    k1(a,**kw.get('k1',{})); v2,l2=k2(a,**kw.get('k2',{})); v3,l3=k3s(a,**kw['k3s']) if 'k3s' in kw else k3(a,**kw.get('k3',{}))
    if kw.get('al',True): print('align',align8(a))
    ref=open('recurrent_scan__spectral_gfnet__glu_gated_bilinear__prompt.s.ref').read().split('\n')
    hdr='\n'.join(ref[:11])+'\n'
    one=kw.get('k1',{}).get('one')
    hdr+='; @launch kernel=k1_kernel grid=(256,1,1) block=(%d,1,1) lds=%d\n'%((512,l2) if one else (256,34816))
    if not one: hdr+=f'; @launch kernel=k2_kernel grid=(256,1,1) block=(512,1,1) lds={l2}\n'
    fu=kw.get('k2',{}).get('fuse')
    if not fu: hdr+=f'; @launch kernel=k3_kernel grid=(256,1,1) block=(512,1,1) lds={l3}\n'
    hdr+='.amdgcn_target "amdgcn-amd-amdhsa--gfx950"\n.text\n'
    t=hdr+a.text()+'.section .rodata,"a"\n'+(desc('k1_kernel',256) if one else desc('k1_kernel',212)+desc('k2_kernel',v2,kw.get('acc2')))+('' if fu else desc('k3_kernel',v3))
    open(path,'w').write(t); print(path,len(a.L),'lines, nops',a.nops)
if __name__=='__main__':
    build('recurrent_scan__spectral_gfnet__glu_gated_bilinear__prompt.s',**DEF)
    build('stamp.s',**DEF)
```

```python
from asmlib import *
XN_OFF=0; A0_OFF=4<<20; H_OFF=8<<20; T_OFF=24<<20; WD_OFF=32<<20; XC_OFF=48<<20; FL_OFF=40<<20
def srd(a,d,b,off,size):
    if off: a(f's_add_u32 s{d}, s{b}, {off}\ns_addc_u32 s{d+1}, s{b+1}, 0')
    else: a(f's_mov_b32 s{d}, s{b}\ns_mov_b32 s{d+1}, s{b+1}')
    a(f's_mov_b32 s{d+2}, {size}\ns_mov_b32 s{d+3}, 0x20000')
class St:
    on=False; n=0
def stamp(a,first=False):
    if not St.on: return
    if first: St.n=0; a('s_memtime s[90:91]')
    a(f's_memrealtime s[{60+2*St.n}:{61+2*St.n}]'); St.n+=1
    if first: a('s_load_dwordx2 s[94:95], s[0:1], 72')
    a('s_waitcnt lgkmcnt(0)')
def stamp_end(a,ki,n0=None,cyc=False,w=True):
    if not St.on: return
    a('s_waitcnt vmcnt(0)' if w else 's_nop 0'); stamp(a); a('s_memtime s[92:93]\ns_waitcnt lgkmcnt(0)')
    srd(a,8,94,(64<<20)+ki*16384,16384)
    a('s_lshl_b32 s12, s2, 6\nv_mov_b32 v1, 0')
    for j in range(St.n): a(f'v_writelane_b32 v1, s{60+2*j}, {j}')
    a(f'v_writelane_b32 v1, s90, 13\nv_writelane_b32 v1, s92, 14\nv_writelane_b32 v1, {St.n}, 15')
    a('v_writelane_b32 v1, s88, 12' if cyc else 'v_writelane_b32 v1, 0, 12')
    a('v_lshlrev_b32 v2, 2, v0\nv_cmp_gt_u32 vcc, 16, v0\ns_cmp_eq_u32 s3, 0\ns_cselect_b64 vcc, vcc, 0\nv_mov_b32 v3, 0x100000\nv_cndmask_b32 v2, v3, v2, vcc\nbuffer_store_dword v1, v2, s[8:11], s12 offen')
    if n0 is not None: St.n=n0
def head(a,name):
    a(f'.globl {name}\n.p2align 8\n.type {name},@function\n{name}:')
def desc(name,vg,acc=None):
    acc=acc or (vg+3)//4*4
    return f'''.p2align 6
.amdhsa_kernel {name}
  .amdhsa_next_free_vgpr {vg}
  .amdhsa_next_free_sgpr 96
  .amdhsa_accum_offset {acc}
  .amdhsa_group_segment_fixed_size 0
  .amdhsa_kernarg_size 80
  .amdhsa_user_sgpr_count 2
  .amdhsa_user_sgpr_kernarg_segment_ptr 1
  .amdhsa_system_sgpr_workgroup_id_x 1
.end_amdhsa_kernel
'''
def trlane(a,d,l,t,hmul):
    a(f'''v_lshrrev_b32 v{d}, 5, v{l}
    v_mul_u32_u24 v{d}, {hmul}, v{d}
    v_bfe_u32 v{t}, v{l}, 2, 2
    v_lshl_add_u32 v{d}, v{t}, 6, v{d}
    v_bfe_u32 v{t}, v{l}, 4, 1
    v_lshl_add_u32 v{d}, v{t}, 5, v{d}
    v_and_b32 v{t}, 3, v{l}
    v_lshl_add_u32 v{d}, v{t}, 3, v{d}''')
def k1(a,sc='',rows=128,early=6,at=31,touch=0,nowait=0,fuse=0,one=0):
    if one: sc=' sc1'; fuse=0
    head(a,'k1_kernel')
    a('s_cmp_ge_u32 s2, 256\ns_cbranch_scc1 '+('k2_end' if one else 'k1_end'))
    stamp(a,True)
    a('''s_load_dwordx2 s[4:5], s[0:1], 0
    s_load_dwordx2 s[6:7], s[0:1], 72
    s_load_dwordx4 s[36:39], s[0:1], 8
    s_load_dwordx4 s[40:43], s[0:1], 32
    s_load_dwordx2 s[80:81], s[0:1], 64
    v_lshrrev_b32 v1, 6, v0
    v_and_b32 v0, 63, v0
    v_readfirstlane_b32 s3, v1
    s_and_b32 s20, s2, 31
    s_lshr_b32 s21, s2, 5''')
    for tg in range(8):
        a(f's_add_u32 s{24+tg}, s21, {tg}\ns_and_b32 s{24+tg}, s{24+tg}, 7\ns_lshl_b32 s{24+tg}, s{24+tg}, 8')
    a('''v_bfe_u32 v3, v0, 2, 2
    v_lshl_add_u32 v2, v1, 4, v3
    v_lshlrev_b32 v2, 16, v2
    s_lshl_b32 s22, s20, 11
    v_add_u32 v2, s22, v2
    v_lshrrev_b32 v161, 4, v0
    v_lshl_add_u32 v2, v161, 6, v2
    v_and_b32 v160, 3, v0
    v_lshl_add_u32 v4, v160, 4, v2
    v_add_u32 v5, 0x40000, v4
    v_add_u32 v6, 0x80000, v4
    v_add_u32 v7, 0xc0000, v4
    v_lshlrev_b32 v173, 4, v0
    s_waitcnt lgkmcnt(0)''')
    srd(a,8,4,0,4<<20)
    if one:
        srd(a,84,6,FL_OFF,8192)
        a('s_cmp_lt_u32 s3, 4\ns_cbranch_scc1 k1_main\ns_cmp_lg_u32 s3, 4\ns_cbranch_scc1 k1_hb'); srd(a,12,80,0,256)
        a('s_cmp_lg_u32 s2, 0\ns_cbranch_scc1 k1_h1\nv_cmp_gt_u32 vcc, 8, v0\ns_movk_i32 s16, 1024')
        for i in range(4): a(f'v_cndmask_b32 v{4+i}, 0, 1, vcc\nv_mov_b32 v{8+i}, 0')
        a('buffer_store_dwordx4 v[4:7], v173, s[84:87], 0 offen sc1')
        for i in range(4): a(f'buffer_store_dwordx4 v[8:11], v173, s[84:87], s16 offen offset:{1024*i} sc1')
        a('s_waitcnt vmcnt(0)\ns_mov_b64 exec, 1\nbuffer_store_dword v4, off, s[12:15], 0 sc1\ns_mov_b64 exec, -1\nk1_h1:')
        srd(a,44,36,0,2048*1026); srd(a,48,38,0,2048*1026); srd(a,52,40,0,rows*7168); srd(a,56,42,0,rows*7168)
        a('s_lshl_b32 s36, s2, 12\ns_lshl_b32 s37, s2, 13')
        def pw():
            for h in range(2):
                for d in (44,48):
                    for o in range(4): a(f'buffer_load_dwordx4 v[208:211], v173, {sr(d,4)}, s37 offen offset:{1024*o}')
                a('s_add_u32 s37, s37, 4096')
        def pg(n):
            for j in range(n):
                for d in (52,56):
                    for o in range(4): a(f'buffer_load_dwordx4 v[208:211], v173, {sr(d,4)}, s36 offen offset:{1024*o}')
                a('s_add_u32 s36, s36, 0x100000')
        if one<3: pg(1)
        elif one>=5: pg((rows*7+1023)//1024); a('s_barrier')
        elif one==4: pg(1); pw(); pg((rows*7+1023)//1024-1)
        else: a('buffer_load_dwordx4 v[208:211], v173, s[52:55], s36 offen')
        a('''s_mov_b32 s16, 0x40000
        s_waitcnt vmcnt(0)
        k1_go:
        buffer_load_dword v4, off, s[12:15], 0 sc1
        s_waitcnt vmcnt(0)
        v_cmp_ne_u32 vcc, 1, v4
        s_sub_u32 s16, s16, 1
        s_cbranch_scc1 k1_gx
        s_cbranch_vccnz k1_go
        k1_gx:''')
        if one==6: pw()
        if one>=5: a('s_branch k1_join')
        if one>2: a('k1_hb:\ns_barrier\ns_branch k1_join\nk1_main:')
        elif one==1: pw(); pg((rows*7+1023)//1024-1); a('k1_hb:\ns_barrier\ns_branch k1_join\nk1_main:')
        else: a('s_barrier'); pw(); pg((rows*7+1023)//1024-1); a('s_branch k1_join\nk1_hb:\ns_barrier\ns_branch k1_join\nk1_main:')
        if one!=3: rows=0
    for t in range(32):
        a(f'buffer_load_dwordx4 {vr(16+4*t,4)}, v{4+(t&3)}, s[8:11], s{24+(t>>2)} offen')
    srd(a,12,6,XN_OFF,4<<20); srd(a,16,6,A0_OFF,4<<20)
    NPF=0
    srd(a,44,36,0,2048*1026); srd(a,48,38,0,2048*1026); srd(a,52,40,0,rows*7168); srd(a,56,42,0,rows*7168)
    a('s_lshl_b32 s36, s2, 2\ns_add_u32 s36, s36, s3\ns_lshl_b32 s37, s36, 11\ns_lshl_b32 s36, s36, 10')
    PFL=[]
    for j in range((rows*7+1023)//1024):
        PFL+=[f'buffer_load_dwordx4 v[208:211], v173, s[52:55], s36 offen',f'buffer_load_dwordx4 v[208:211], v173, s[56:59], s36 offen\ns_add_u32 s36, s36, 0x100000']
        if j==0: PFL+=[f'buffer_load_dwordx4 v[208:211], v173, {sr(d,4)}, s37 offen offset:{o}' for d in (44,48) for o in (0,1024)]
    if touch:
        a('s_lshl_b32 s36, s36, 3\nv_lshlrev_b32 v209, 7, v0\nv_lshlrev_b32 v210, 5, v0')
        PFL=[f'buffer_load_dword v208, v210, {sr(d,4)}, s37 offen' for d in (44,48)]+[f'buffer_load_dword v208, v209, {sr(d,4)}, s36 offen' for d in (52,56)]
        if touch==2: srd(a,40,80,0,3584*2048); PFL.append('buffer_load_dword v208, v209, s[40:43], s36 offen')
    NPF=min(early,len(PFL))
    for x in PFL[:NPF]: a(x)
    PFL=PFL[NPF:]
    for i in range(4): a(f'v_mov_b32 v{12+i}, 0x3f803f80')
    a('''s_and_b32 s23, s3, 1
    s_lshl_b32 s23, s23, 5
    v_and_b32 v174, 31, v0
    v_add_u32 v162, s23, v174
    v_lshrrev_b32 v163, 1, v162
    v_and_b32 v164, 1, v162
    v_cmp_eq_u32 vcc, 1, v162
    v_cndmask_b32 v163, v163, 32, vcc
    v_cndmask_b32 v164, v164, 0, vcc
    v_cvt_f32_u32 v163, v163
    v_cvt_f32_u32 v164, v164
    v_mul_f32 v163, 0x3c800000, v163
    v_mul_f32 v164, 0x3e800000, v164
    v_lshrrev_b32 v165, 5, v0
    v_lshlrev_b32 v166, 3, v165
    v_cvt_f32_u32 v166, v166
    v_fma_f32 v164, v166, v163, v164''')
    for s in range(4):
        for e in range(0,8,2):
            a(f'''v_fmamk_f32 v166, v163, {fx(16*s+e)}, v164
            v_fmamk_f32 v167, v163, {fx(16*s+e+1)}, v164
            v_cos_f32 v166, v166
            v_cos_f32 v167, v167
            v_cvt_pk_bf16_f32 v{144+4*s+e//2}, v166, v167''')
    a('''s_lshl_b32 s34, s20, 17
    s_lshl_b32 s32, s21, 13
    s_add_u32 s34, s34, s32
    s_lshr_b32 s33, s3, 1
    s_lshl_b32 s32, s33, 16
    s_add_u32 s34, s34, s32
    s_lshl_b32 s32, s23, 5
    s_add_u32 s34, s34, s32
    s_add_u32 s35, s34, 4096
    s_lshl_b32 s32, s3, 12
    v_add_u32 v168, s32, v173
    v_lshlrev_b32 v169, 10, v3
    v_lshl_add_u32 v169, v160, 6, v169
    v_lshl_add_u32 v169, v161, 4, v169
    v_add_u32 v169, s32, v169
    v_mul_u32_u24 v172, 80, v3
    s_mul_i32 s32, s3, 4608
    s_add_u32 s32, s32, 16384
    v_mul_u32_u24 v175, 144, v174
    v_lshl_add_u32 v175, v165, 3, v175
    v_add_u32 v175, s32, v175
    v_lshrrev_b32 v166, 3, v0
    v_and_b32 v167, 7, v0
    v_mul_u32_u24 v162, 144, v166
    v_lshl_add_u32 v162, v167, 4, v162
    v_add_u32 v162, s32, v162
    v_lshlrev_b32 v171, 16, v166
    v_lshl_add_u32 v171, v167, 4, v171
    s_lshl_b32 s22, s20, 11
    s_lshl_b32 s32, s21, 8
    s_add_u32 s22, s22, s32
    s_lshl_b32 s32, s33, 7
    s_add_u32 s22, s22, s32
    s_lshl_b32 s32, s23, 16
    s_add_u32 s22, s22, s32
    v_cmp_eq_u32 s[24:25], 1, v160
    v_cmp_eq_u32 s[26:27], 2, v160
    v_cmp_eq_u32 s[28:29], 3, v160''')
    trlane(a,170,0,166,2048)
    a('s_lshl_b32 s32, s33, 9\nv_add_u32 v170, s32, v170')
    stamp(a)
    SU,GR=176,192
    for t in range(32):
        a(f's_waitcnt vmcnt({31+NPF-t})')
        if t in(0,31): stamp(a)
        if t>=at and PFL and t<31: a(PFL.pop(0)); NPF+=1
        d=vr(16+4*t,4); u=t&3
        a(f'v_mfma_f32_16x16x32_bf16 {vr(SU+4*u,4)}, v[12:15], {d}, {"0" if t<4 else vr(SU+4*u,4)}')
        a(f'v_mfma_f32_16x16x32_bf16 {vr(GR+4*u,4)}, {d}, {d}, {"0" if t<4 else vr(GR+4*u,4)}')
    if at<40:
        for x in PFL: a(x)
        PFL=[]
    def each(f):
        for u in range(4): a(f.replace('S1',f'v{SU+4*u+1}').replace('G1',f'v{GR+4*u+1}').replace('G2',f'v{GR+4*u+2}').replace('G3',f'v{GR+4*u+3}').replace('S',f'v{SU+4*u}').replace('G',f'v{GR+4*u}'))
    for f in ['v_cndmask_b32 G, G, G1, s[24:25]','v_cndmask_b32 G, G, G2, s[26:27]','v_cndmask_b32 G, G, G3, s[28:29]',
      'v_add_f32_dpp G, G, G quad_perm:[1,0,3,2] row_mask:0xf bank_mask:0xf','v_add_f32_dpp G, G, G quad_perm:[2,3,0,1] row_mask:0xf bank_mask:0xf',
      'ds_bpermute_b32 G, v172, G',
      'v_add_f32_dpp S, S, S quad_perm:[1,0,3,2] row_mask:0xf bank_mask:0xf','v_add_f32_dpp S, S, S quad_perm:[2,3,0,1] row_mask:0xf bank_mask:0xf',
      'v_mul_f32 S, 0x3a800000, S','v_mul_f32 S1, S, S','v_cvt_pk_bf16_f32 S, S, S','v_and_b32 S, 0xffff0000, S',None,
      'v_mul_f32 G, 0x3a800000, G','v_sub_f32 G, G, S1','v_max_f32 G, 0, G','v_cvt_pk_bf16_f32 G, G, G','v_and_b32 G, 0xffff0000, G',
      'v_add_f32 G, 0x3727c5ac, G','v_cvt_pk_bf16_f32 G, G, G','v_and_b32 G, 0xffff0000, G','v_sqrt_f32 G, G',
      'v_cvt_pk_bf16_f32 G, G, G','v_and_b32 G, 0xffff0000, G','v_rcp_f32 G, G']:
        if f: each(f)
        else: a('s_waitcnt lgkmcnt(0)')
    for u in range(4):
        for j in range(4):
            r=16+4*u+j
            a(f'''v_lshlrev_b32 v5, 16, v{r}
            v_and_b32 v6, 0xffff0000, v{r}
            v_sub_f32 v5, v5, v{SU+4*u}
            v_sub_f32 v6, v6, v{SU+4*u}
            v_cvt_pk_bf16_f32 v7, v5, v6
            v_lshlrev_b32 v5, 16, v7
            v_and_b32 v6, 0xffff0000, v7
            v_mul_f32 v5, v5, v{GR+4*u}
            v_mul_f32 v6, v6, v{GR+4*u}
            v_cvt_pk_bf16_f32 v{r}, v5, v6''')
        a(f'ds_write_b128 v168, {vr(16+4*u,4)} offset:{u*1024}')
    for t in range(4): a(f'ds_read_b128 {vr(112+4*t,4)}, v169 offset:{t*256}')
    a('s_waitcnt lgkmcnt(0)\ns_barrier'); stamp(a)
    for nb in range(2):
        for s in range(4):
            for j in range(2):
                a(f'ds_read_b64_tr_b16 {vr(32+nb*16+s*4+j*2,2)}, v170 offset:{s*4096+j*1024+nb*256}')
    for t in range(4): a(f'buffer_store_dwordx4 {vr(112+4*t,4)}, v173, s[12:15], s{34+(t>>1)} offen offset:{(t&1)*2048}{sc}')
    if at==40:
        for x in PFL: a(x)
        PFL=[]
    for nb in range(2):
        a(f's_waitcnt lgkmcnt({8-8*nb})')
        for s in range(4):
            acc=vr(64+16*nb,16)
            a(f'v_mfma_f32_32x32x16_bf16 {acc}, {vr(32+nb*16+s*4,4)}, {vr(144+4*s,4)}, {"0" if s==0 else acc}')
    for nb in range(2):
        for g in range(4):
            b=64+16*nb+4*g; d=96+8*nb+2*g
            for j in range(2): a(f'v_cvt_pk_bf16_f32 v{d+j}, v{b+2*j}, v{b+2*j+1}')
            a(f'ds_write_b64 v175, {vr(d,2)} offset:{nb*64+g*16}')
    for z in range(4): a(f'ds_read_b128 {vr(16+4*z,4)}, v162 offset:{z*8*144}')
    for z in range(4):
        a(f's_waitcnt lgkmcnt({3-z})\nbuffer_store_dwordx4 {vr(16+4*z,4)}, v171, s[16:19], s22 offen{sc}\ns_add_u32 s22, s22, 0x80000')
    for x in PFL: a(x)
    if fuse:
        a('s_cmp_lg_u32 s2, 0\ns_cbranch_scc1 k1_nf\ns_nop 0'); srd(a,8,6,FL_OFF,4096)
        a('s_lshl_b32 s12, s3, 10\ns_cmp_eq_u32 s3, 0\ns_cselect_b32 s13, 8, 0\nv_cmp_gt_u32 vcc, s13, v0')
        for i in range(4): a(f'v_cndmask_b32 v{4+i}, 0, 1, vcc')
        a('buffer_store_dwordx4 v[4:7], v173, s[8:11], s12 offen\nk1_nf:')
    if one:
        a('s_lshl_b32 s57, s20, 3\ns_add_u32 s57, s57, s21\ns_lshl_b32 s57, s57, 2\ns_add_u32 s57, s57, 4096\ns_waitcnt vmcnt(0)\nk1_join:\ns_barrier')
        St.n=1; stamp(a); a(flag_set(a,'k1_fc',0,245,57))
        return
    stamp(a); stamp_end(a,0,w=not nowait)
    a('k1_end:\ns_endpgm')

def flag_set(a,lab,off,v,so=59):
    return f"""s_cmp_lg_u32 s3, 0
    s_cbranch_scc1 {lab}
    s_lshl_b32 s59, s2, 2
    v_mov_b32 v{v}, 1
    s_mov_b64 exec, 1
    buffer_store_dword v{v}, off, s[84:87], s{so} offset:{off} sc1
    s_mov_b64 exec, -1
    {lab}:"""
def flag_wait(a,lab,off,vm,x4=None):
    if x4 is None: x4=not off
    a(f"""s_mov_b32 s59, 0x40000
    s_waitcnt vmcnt({vm})
    {lab}:
    v_and_b32 v240, v240, v241
    v_and_b32 v242, v242, v243
    v_and_b32 v240, v240, v242
    v_cmp_ne_u32 vcc, 1, v240
    s_sub_u32 s59, s59, 1
    s_cbranch_scc1 {lab}_x
    s_cbranch_vccz {lab}_x
    {'buffer_load_dword v240' if not x4 else 'buffer_load_dwordx4 v[240:243]'}, v244, s[84:87], 0 offen offset:{off} sc1
    s_waitcnt vmcnt(0)
    s_branch {lab}
    {lab}_x:""")
def first_wait(a,lab,x4):
    a(f's_cmp_lg_u32 s3, 0\ns_cbranch_scc1 {lab}_s\nv_mov_b32 v240, 0\nv_mov_b32 v241, 1\nv_mov_b32 v242, 1\nv_mov_b32 v243, 1')
    if x4: a('v_lshlrev_b32 v244, 4, v0\nv_add_u32 v244, 4096, v244')
    else: a('v_and_b32 v244, 31, v0\ns_lshl_b32 s59, s28, 7\ns_add_u32 s59, s59, 4096\nv_lshl_add_u32 v244, v244, 2, s59')
    flag_wait(a,lab,0,63,x4); a(f'{lab}_s:')
```

```python
from k1 import *
M32='v_mfma_f32_32x32x16_bf16'
def k2(a,NS=4,fft=True,pf=True,sc='',exp='snake',wd=None,wsc='',pfst=None,roll=None,fill=None,fuse=0,early=0,one=0):
    xsc=' sc1' if one else ''
    if not one:
        head(a,'k2_kernel'); a('s_cmp_ge_u32 s2, 256\ns_cbranch_scc1 k2_end'); stamp(a,True)
        a('v_lshrrev_b32 v1, 6, v0\nv_and_b32 v0, 63, v0\nv_readfirstlane_b32 s3, v1')
    a('''    s_load_dwordx4 s[36:39], s[0:1], 32
    s_load_dwordx4 s[40:43], s[0:1], 8
    s_load_dwordx2 s[48:49], s[0:1], 48
    s_load_dwordx2 s[6:7], s[0:1], 72
    s_cmp_lt_u32 s2, 32
    s_cbranch_scc1 k2_fft
    s_lshr_b32 s30, s2, 3
    s_sub_u32 s30, s30, 4
    s_and_b32 s28, s2, 1
    s_lshl_b32 s28, s28, 2
    s_and_b32 s31, s30, 3
    s_add_u32 s28, s28, s31
    s_bfe_u32 s29, s2, 0x20001
    s_mul_i32 s29, s29, 7
    s_lshr_b32 s31, s30, 2
    s_add_u32 s29, s29, s31
    v_lshlrev_b32 v2, 4, v0
    v_bfe_u32 v4, v0, 2, 2
    v_mul_u32_u24 v3, 7168, v4
    v_lshrrev_b32 v4, 4, v0
    v_lshl_add_u32 v3, v4, 6, v3
    v_and_b32 v4, 3, v0
    s_and_b32 s32, s3, 2
    v_xor_b32 v4, s32, v4
    v_lshl_add_u32 v3, v4, 4, v3
    s_lshl_b32 s32, s28, 3
    s_add_u32 s32, s32, s3
    s_lshl_b32 s32, s32, 16
    s_mul_i32 s33, s3, 4*7168
    s_lshl_b32 s34, s29, 8
    s_add_u32 s33, s33, s34
    s_lshl_b32 s34, s3, 11
    s_lshl_b32 s35, s3, 10
    s_sub_u32 s34, s34, 0x400
    s_waitcnt lgkmcnt(0)''')
    srd(a,8,6,XN_OFF,4<<20); srd(a,12,36,0,7168*1024); srd(a,16,38,0,7168*1024); srd(a,20,6,H_OFF,2048*3584*2)
    def loads(slot):
        o=slot*32768
        return [f's_add_u32 m0, s35, {o+16384}\nbuffer_load_dwordx4 v3, s[12:15], s33 offen lds',
                f's_add_u32 m0, s35, {o+24576}\nbuffer_load_dwordx4 v3, s[16:19], s33 offen lds\ns_add_u32 s33, s33, 32*7168',
                f's_add_u32 m0, s34, {o+1024}\nbuffer_load_dwordx4 v2, s[8:11], s32 offen{xsc} lds',
                f'buffer_load_dwordx4 v2, s[8:11], s32 offen offset:1024{xsc} lds\ns_add_u32 s32, s32, 2048']
    if one:
        first_wait(a,'k2_wc',0)
        for st in range(NS): a('\n'.join(loads(st)[:2]))
        a('s_barrier')
    for st in range(NS):
        for x in loads(st)[2 if one else 0:]: a(x)
    if fuse: srd(a,84,6,FL_OFF,4096); sc=wsc=' sc1'
    NPF=0
    a('s_sub_u32 s46, s2, 32\ns_lshl_b32 s46, s46, 3\ns_add_u32 s46, s46, s3')
    srd(a,24,48,0,3584*2048)
    if wd:
        srd(a,52,6,WD_OFF,3584*2048)
        a('''s_lshr_b32 s50, s46, 2
        s_and_b32 s51, s46, 3
        s_lshl_b32 s56, s50, 14
        s_lshl_b32 s47, s51, 9
        s_add_u32 s56, s56, s47
        s_lshl_b32 s50, s50, 10
        s_mul_i32 s51, s51, 4*458752
        s_add_u32 s57, s50, s51
        v_lshrrev_b32 v4, 5, v0
        v_bfe_u32 v14, v0, 2, 2
        v_lshl_add_u32 v14, v4, 2, v14
        v_lshlrev_b32 v14, 11, v14
        v_bfe_u32 v4, v0, 4, 1
        v_lshl_add_u32 v14, v4, 6, v14
        v_and_b32 v4, 3, v0
        v_lshl_add_u32 v14, v4, 4, v14
        v_and_b32 v4, 32, v0
        v_xor_b32 v14, v14, v4''')
    if pf:
        r0=128 if pf is True else pf; per=(1024-r0)*4
        a(f's_mul_i32 s47, s46, {per}\ns_add_u32 s47, s47, {r0*7168}')
        PF=[f'buffer_load_dwordx4 v[116:119], v2, {sr(d,4)}, s47 offen offset:{min(o,per-1024)}' for d in (12,16) for o in range(0,per,1024)]
        if not pfst:
            for x in PF: a(x)
            NPF=len(PF)
    a('''s_lshl_b32 s46, s46, 12
    s_and_b32 s30, s3, 3
    s_lshr_b32 s31, s3, 2
    v_lshrrev_b32 v4, 4, v0
    v_lshlrev_b32 v8, 11, v4
    v_and_b32 v4, 1, v4
    v_lshl_add_u32 v8, v4, 5, v8
    v_bfe_u32 v4, v0, 2, 2
    v_lshl_add_u32 v8, v4, 6, v8
    v_and_b32 v4, 3, v0
    v_lshl_add_u32 v8, v4, 3, v8
    s_lshl_b32 s44, s30, 8
    s_add_u32 s44, s44, 16384
    v_add_u32 v8, s44, v8
    s_lshl_b32 s44, s31, 13
    v_add_u32 v5, s44, v2
    v_add_u32 v6, 0x10000, v5
    v_add_u32 v7, 0x20000, v5
    v_add_u32 v9, 0x10000, v8
    v_add_u32 v10, 0x20000, v8
    v_xor_b32 v11, 32, v8
    v_xor_b32 v12, 32, v9
    v_xor_b32 v13, 32, v10''')
    ACC=128; XF=16; WFR=48
    for i in range(128): a(f'v_accvgpr_write_b32 a{i}, 0' if 'agpr' in exp else f'v_mov_b32 v{ACC+i}, 0')
    def rdx(slot,hf):
        return [f'ds_read_b128 {vr(XF+16*hf+4*i,4)}, v{5+slot//2} offset:{(slot&1)*32768+(4*hf+i)*1024}' for i in range(4)]
    def rdw(slot,buf):
        return [f'ds_read_b64_tr_b16 {vr(WFR+16*buf+8*mat+4*t+2*j,2)}, v{8+3*t+slot//2} offset:{(slot&1)*32768+mat*8192+j*1024}' for mat in range(2) for t in range(2) for j in range(2)]
    def mm(hf,buf,F):
        n=0
        for i0 in range(4):
            for c0 in range(4):
                i,c=i0,c0
                if 'snake' in exp and i0&1: c=3-c0
                if 'swap' in exp: i,c=c,i
                acc=vr(ACC+(4*hf+i)*16+4*c,4)
                if 'agpr' in exp: acc='a[%d:%d]'%((4*hf+i)*16+4*c,(4*hf+i)*16+4*c+3)
                a(f'v_mfma_f32_16x16x32_bf16 {acc}, {vr(WFR+16*buf+4*c,4)}, {vr(XF+16*hf+4*i,4)}, {acc}')
                if n in F: a(F[n])
                n+=1
    stamp(a); a(f's_waitcnt vmcnt({6 if one else 4*(NS-1)+NPF})\ns_barrier'); stamp(a)
    for x in rdw(0,0)+rdx(0,0): a(x)
    EP0='''s_lshl_b32 s32, s28, 3
    s_lshl_b32 s33, s31, 2
    s_add_u32 s32, s32, s33
    s_mul_i32 s32, s32, 112
    s_lshl_b32 s33, s29, 2
    s_add_u32 s32, s32, s33
    s_add_u32 s32, s32, s30
    s_lshl_b32 s32, s32, 11'''+('\nbuffer_load_dwordx4 v[116:119], v2, s[84:87], 0 offen sc1' if fuse else '')
    def epi(pt):
        g=ACC+pt*16; d=80+pt*4
        m=[f'v_mul_f32 v{g+i}, v{g+i}, v{g+8+i}' for i in range(8)]+[f'v_cvt_pk_bf16_f32 v{d+j}, v{g+2*j}, v{g+2*j+1}' for j in range(4)]
        m[11]+=f'\nbuffer_store_dwordx4 {vr(d,4)}, v2, s[20:23], s32 offen offset:{1024*(pt&1)}{sc}'+('\ns_add_u32 s32, s32, 224*1024' if pt&1 else '')
        return ['\n'.join(m[3*k:3*k+3]) for k in range(4)]
    def stage(st,ld,last,vm,extra=[],x15=None):
        slot=st%NS; buf=st&1
        F=dict(enumerate(rdx(slot,1))) if ('noread' not in exp or st==0) else {}
        if 'nodma' in exp: ld=False; vm=63
        for i,x in enumerate(loads((slot-1)%NS) if ld else extra):
            y=x.split('\n')
            if y[0].startswith('s_add_u32 m0'): F[4+3*i]=y[0]; y=y[1:]
            F[5+3*i]='\n'.join(y)
        if x15: F[15]=x15
        a('s_waitcnt lgkmcnt(0)')
        mm(0,buf,F)
        a('s_waitcnt lgkmcnt(0)' if last else f's_waitcnt vmcnt({vm}) lgkmcnt(0)\ns_barrier')
        if last and early: a(EP0)
        mm(1,buf,(dict(enumerate(sum((epi(p) for p in range(4)),[]))) if early else {}) if last else dict(enumerate(rdw((slot+1)%NS,buf^1)+rdx((slot+1)%NS,0))))
    nst=32; U=NS if NS%2==0 else 2*NS
    pre=NS-1; nloop=(nst-NS+1-pre)//U
    XR={}; XN={}
    if roll:
        R0,PRE=roll
        a(f's_lshr_b32 s47, s46, 3\ns_add_u32 s47, s47, {R0*7168}\nv_lshlrev_b32 v15, 3, v0\ns_add_u32 s58, s56, 384\ns_add_u32 s59, s57, 3*458752')
        g='buffer_load_dwordx2 v[116:117], v15, s[12:15], s47 offen'; u='buffer_load_dwordx2 v[116:117], v15, s[16:19], s47 offen\ns_add_u32 s47, s47, 128*7168'
        l='buffer_load_dwordx4 v[96:99], v14, s[24:27], s56 offen\ns_add_u32 s56, s56, 128\ns_min_u32 s56, s56, s58'
        if PRE: XR[0]=g; XR[1]=u
        XR[2]=l
        for j in range(nloop): XR[3+4*j]=g; XR[5+4*j]=u; XR[6+4*j]=f'buffer_store_dwordx4 v[96:99], v2, s[52:55], s57 offen{wsc}\ns_add_u32 s57, s57, 458752\ns_min_u32 s57, s57, s59\n'+l
        XN={k:v.count('buffer') for k,v in XR.items()}
    xn=lambda st: sum(XN.get(j,0) for j in range(st-2,st+1))
    for st in range(pre): stage(st,st>0,False,4+2*st if one else 4*(NS-2)+NPF+xn(st),x15=XR.get(st))
    if St.on: a('s_memtime s[90:91]'); stamp(a); St.n-=one
    if wd and not roll:
        X={}
        for i in range(4):
            X[wd[0][i]]=f'buffer_load_dwordx4 {vr(96+4*i,4)}, v14, s[24:27], s56 offen offset:{128*i}'
            X[wd[1][i]]=f'buffer_store_dwordx4 {vr(96+4*i,4)}, v2, s[52:55], s57 offen{wsc}\ns_add_u32 s57, s57, 458752'
            assert wd[1][i]>=wd[0][i]+4
        if fill:
            srd(a,80,6,XC_OFF,1792*5120); a('s_lshr_b32 s84, s46, 2\ns_add_u32 s84, s84, s46')
            for i in range(4): a(f'v_mov_b32 v{112+i}, -1')
            for i,st in enumerate(fill): X[st]=X.get(st,'')+f'\nbuffer_store_dwordx4 v[112:115], v2, s[80:83], s84 offen sc1\ns_add_u32 s84, s84, 1024'
        if pfst:
            for st,x in zip(pfst,PF): assert st not in X; X[st]=x
        if 'nox' in exp: X={max(X):'s_nop 0'}
        if fuse: assert fuse>=max(wd[1])+4 and fuse not in X; X[fuse]=flag_set(a,'k2_fa',0,120)
        nb=(max(X)+1-pre+U-1)//U
        for st in range(pre,pre+nb*U): stage(st,True,False,4*(NS-2)+sum(X.get(j,'').count('dwordx4') for j in range(st-2,st+1)),x15=X.get(st))
        pre+=nb*U; nloop-=nb
    a(f's_mov_b32 s45, {nloop}\nk2_loop:')
    for u in range(U): stage(pre+u,True,False,4*(NS-2)+min(xn(pre+u),xn(pre+u+U)),x15=XR.get(pre+u))
    a('s_sub_u32 s45, s45, 1\ns_cmp_lg_u32 s45, 0\ns_cbranch_scc1 k2_loop')
    if St.on: a('s_memtime s[88:89]'); stamp(a); a('s_sub_u32 s88, s88, s90')
    for st in range(pre+nloop*U,nst):
        left=nst-1-st
        ex=[f'buffer_load_dwordx4 v[116:119], v2, s[24:27], s46 offen offset:{1024*i}' for i in range(4)] if (not wd and left==1) else []
        stage(st,left>=NS-1,left==0,4*max(0,min(NS-2,left-1))+len(ex)+(xn(st) if left>=NS-1 else 0),ex)
    stamp(a)
    if not early: a(EP0)
    for pt in range(4 if early else 0,8):
        for x in epi(pt): a(x)
    if fuse:
        a('s_cmp_ge_u32 s29, 14\ns_cselect_b32 s57, 128-56, 0\ns_lshl_b32 s28, s28, 8\ns_lshl_b32 s29, s29, 2\ns_add_u32 s57, s57, s28\ns_add_u32 s57, s57, s29\ns_waitcnt vmcnt(8)')
        for i in range(4): a(f'v_mov_b32 v{240+i}, v{116+i}')
        a('s_branch k3_in\nk2_end:\ns_endpgm\nk2_fft:'); St.n=1
        if one: first_wait(a,'k2_wd',1); a('s_barrier')
        phaseB(a,1); a('k3_in:'); St.n=6
        return 256, 163840
    stamp(a); stamp_end(a,1,1,True)
    a('s_endpgm\nk2_fft:')
    if fft: phaseB(a)
    a('k2_end:\ns_endpgm')
    return 256, 163840
def cmm(a,dre,dim,xre,xim,P,Q,R,T,dataA=True):
    def one(d,x,c,first):
        o=(vr(x,4),vr(c,4)) if dataA else (vr(c,4),vr(x,4))
        a(f'{M32} {vr(d,16)}, {o[0]}, {o[1]}, {"0" if first else vr(d,16)}')
    for s in range(2): one(dre,xre+4*s,P+4*s,s==0)
    for s in range(2): one(dre,xim+4*s,Q+4*s,False)
    for s in range(2): one(dim,xre+4*s,R+4*s,s==0)
    for s in range(2): one(dim,xim+4*s,T+4*s,False)
def phaseB(a,fuse=0):
    sc=' sc1' if fuse else ''
    P,Q,R,T=16,24,32,40; C,SP,SN=48,56,64; TC,TS=72,88; X=104; D=120; WR,WI=152,168; WX=184; X2=188; D2=204
    a('s_waitcnt lgkmcnt(0)')
    srd(a,8,6,A0_OFF,4<<20); srd(a,12,40,0,2048*1026); srd(a,16,42,0,2048*1026); srd(a,20,6,T_OFF,4<<20)
    a('''v_lshrrev_b32 v2, 2, v0
    v_lshlrev_b32 v2, 11, v2
    v_and_b32 v3, 3, v0
    v_lshl_add_u32 v2, v3, 4, v2
    s_lshl_b32 s28, s2, 17
    s_lshl_b32 s29, s3, 8
    s_add_u32 s28, s28, s29
    s_lshl_b32 s29, s3, 14''')
    for al in range(4):
        for pl in range(2):
            for u in range(2):
                a(f's_add_u32 m0, s29, {al*4096+pl*2048+u*1024}\ns_add_u32 s30, s28, {pl*65536+u*32768+al*64}\nbuffer_load_dwordx4 v2, s[8:11], s30 offen{sc} lds')
    a('''v_lshrrev_b32 v4, 5, v0
    v_and_b32 v5, 31, v0
    v_lshlrev_b32 v6, 1, v5
    v_lshl_add_u32 v6, v4, 8, v6
    v_sub_u32 v7, 320, v6
    s_lshl_b32 s50, s3, 12
    s_add_u32 s50, s50, 131072
    s_and_b32 s51, s2, 1
    s_lshl_b32 s51, s51, 1
    s_sub_u32 s52, s50, s51
    v_add_u32 v7, s52, v7
    s_add_u32 s52, s52, 2048
    v_add_u32 v6, s52, v6
    v_lshlrev_b32 v8, 4, v0
    v_add_u32 v8, s51, v8
    v_and_b32 v9, 2, v0
    v_lshlrev_b32 v9, 9, v9
    v_and_b32 v10, 1, v0
    v_cmp_eq_u32 s[54:55], 1, v10
    s_mov_b64 s[56:57], 1
    s_lshl_b32 s31, s3, 8
    s_add_u32 s31, s31, s2
    s_mov_b32 s32, 4
    s_cmp_lg_u32 s2, 0
    s_cbranch_scc1 pb_0
    s_add_u32 s31, s31, 32
    s_cmp_lt_u32 s3, 4
    s_cbranch_scc1 pb_0
    s_sub_u32 s31, s31, 1056
    s_cmp_lg_u32 s3, 4
    s_cbranch_scc1 pb_0
    s_mov_b32 s32, 5
    pb_0:''')
    def wload():
        a('''s_sub_u32 s34, 2048, s31
        s_and_b32 s34, s34, 2047
        s_mul_i32 s33, s31, 1026
        s_mul_i32 s34, s34, 1026''')
        for i,(row,d) in enumerate(((34,12),(34,16),(33,12),(33,16))):
            a(f's_add_u32 m0, s50, {1024*i}\nbuffer_load_dwordx4 v8, {sr(d,4)}, s{row} offen lds')
        a(f'''v_add_u32 v10, s33, v9
        v_add_u32 v{WX+2}, s34, v9
        v_cndmask_b32 v10, v10, v{WX+2}, s[54:55]
        buffer_load_short_d16_hi v{WX}, v10, s[12:15], 0 offen
        buffer_load_short_d16_hi v{WX+1}, v10, s[16:19], 0 offen''')
    def wread():
        for r in range(16):
            for w,pl in ((WR,0),(WI,1)):
                if r<8: a(f'ds_read_u16_d16_hi v{w+r}, v6 offset:{pl*1024+(r&3)*64+(r>>2)*512}')
                else: a(f'ds_read_u16_d16_hi v{w+r}, v7 offset:{pl*1024+(3-(r&3))*64+(3-(r>>2))*512}')
    for i in range(36): a(f'v_mov_b32 v{WR+i}, 0')
    wload()
    def trig(step,base,kf,amp=None,fix=None,dst=(C,SP,SN)):
        for s in range(2):
            for e in range(0,8,2):
                b=base[s] if isinstance(base,tuple) else base
                a(f'v_fmamk_f32 v{D}, v{step}, {fx(kf(s,e))}, v{b}\nv_fmamk_f32 v{D+1}, v{step}, {fx(kf(s,e+1))}, v{b}')
                a(f'v_cos_f32 v{D+2}, v{D}\nv_cos_f32 v{D+3}, v{D+1}\nv_sin_f32 v{D+4}, v{D}\nv_sin_f32 v{D+5}, v{D+1}')
                if amp:
                    for i in range(2,6): a(f'v_mul_f32 v{D+i}, {fx(amp)}, v{D+i}')
                if fix and s==1 and e==0: fix()
                i=4*s+e//2
                a(f'v_cvt_pk_bf16_f32 v{dst[0]+i}, v{D+2}, v{D+3}\nv_cvt_pk_bf16_f32 v{dst[1]+i}, v{D+4}, v{D+5}\nv_xor_b32 v{dst[2]+i}, 0x80008000, v{dst[1]+i}')
    a('''v_lshlrev_b32 v11, 6, v5
    v_add_u32 v11, s2, v11
    s_cmp_lg_u32 s2, 0
    s_cbranch_scc1 pb_1
    v_add_u32 v12, 32, v11
    v_subrev_u32 v11, 1024, v11
    v_cmp_gt_u32 vcc, 16, v5
    v_cndmask_b32 v11, v11, v12, vcc
    pb_1:
    v_cvt_f32_u32 v11, v11
    v_mul_f32 v11, 0x3a000000, v11
    v_lshlrev_b32 v12, 3, v4
    v_cvt_f32_u32 v12, v12
    v_mul_f32 v12, v12, v11''')
    trig(11,12,lambda s,e:16*s+e,dst=(P,Q,R))
    for i in range(8): a(f'v_mov_b32 v{T+i}, v{P+i}')
    a('s_cmp_lg_u32 s2, 0\ns_cbranch_scc1 pb_2\nv_cmp_gt_u32 vcc, 16, v5\nv_cmp_eq_u32 s[46:47], 16, v5\nv_mov_b32 v13, 0xbf803f80')
    for i in range(8):
        a(f'''v_cndmask_b32 v{Q+i}, 0, v{P+i}, vcc
        v_cndmask_b32 v{T+i}, 0, v{R+i}, vcc
        v_cndmask_b32 v{P+i}, v{P+i}, 0, vcc
        v_cndmask_b32 v{R+i}, v{R+i}, 0, vcc
        v_cndmask_b32 v{R+i}, v{R+i}, v13, s[46:47]''')
    a('pb_2:')
    a('''v_cvt_f32_u32 v11, v5
    v_mul_f32 v11, 0x3d000000, v11
    v_lshlrev_b32 v12, 2, v4
    v_cvt_f32_u32 v12, v12
    v_mul_f32 v12, v12, v11''')
    trig(11,12,lambda s,e:16*s+(e&3)+8*(e>>2))
    a('v_mul_f32 v11, 0x3d000000, v11\nv_mul_f32 v12, 0x3d000000, v12')
    for r in range(16):
        a(f'v_fmamk_f32 v{D}, v11, {fx((r&3)+8*(r>>2))}, v12\nv_cos_f32 v{TC+r}, v{D}\nv_sin_f32 v{TS+r}, v{D}')
    trlane(a,2,0,14,512)
    a('''v_add_u32 v2, s29, v2
    s_lshl_b32 s30, s3, 4
    s_and_b32 s30, s30, 0x30
    s_or_b32 s35, s30, s29
    v_lshlrev_b32 v3, 6, v5
    v_bfe_u32 v14, v5, 1, 3
    v_xor_b32 v14, v14, v4
    v_lshl_add_u32 v3, v14, 3, v3
    v_and_b32 v12, 0xff, v3
    v_xor_b32 v3, s35, v3
    v_lshl_add_u32 v12, v5, 12, v12
    s_lshl_b32 s44, s3, 8
    s_or_b32 s44, s44, s30
    v_xor_b32 v12, s44, v12
    v_bfe_u32 v14, v0, 3, 1
    v_lshl_add_u32 v15, v4, 2, v14
    v_lshlrev_b32 v15, 3, v15
    v_xor_b32 v13, v2, v15
    v_xor_b32 v13, s30, v13
    v_lshl_add_u32 v15, v4, 1, v14
    v_lshlrev_b32 v15, 3, v15
    v_and_b32 v11, 0xff, v2
    v_xor_b32 v11, v11, v15
    v_bfe_u32 v14, v0, 2, 2
    v_lshl_add_u32 v14, v4, 2, v14
    v_lshl_add_u32 v11, v14, 12, v11
    v_xor_b32 v11, s44, v11''')
    def pack(d,x):
        for i in range(16): a(f'v_cvt_pk_bf16_f32 v{x+i}, v{d+2*i}, v{d+2*i+1}')
    XB=(X,X2); DB=(D,D2); O=236
    def srd_f(al):
        a(f's_waitcnt vmcnt({6+4*(3-al)})')
        for pl in range(2):
            for s in range(2):
                for j in range(2): a(f'ds_read_b64_tr_b16 {vr(XB[al&1]+8*pl+4*s+2*j,2)}, v2 offset:{al*4096+pl*2048+s*1024+j*256}')
    def swr_f(al):
        pack(DB[al&1],O)
        for g in range(4):
            a(f'v_xor_b32 v14, {al*64^((2*g^(al>>1))*8)}, v3')
            for pl in range(2): a(f'ds_write_b64 v14, {vr(O+8*pl+2*g,2)} offset:{al*4096+pl*2048}')
    def sstage(rdf,wrf):
        rdf(0)
        for al in range(4):
            a('s_waitcnt lgkmcnt(0)')
            if al<3: rdf(al+1)
            cmm(a,DB[al&1],DB[al&1]+16,XB[al&1],XB[al&1]+8,P,Q,R,T)
            if al>0: wrf(al-1)
        wrf(3)
    stamp(a); sstage(srd_f,swr_f); stamp(a)
    a('s_mov_b32 s45, 0\ns_waitcnt lgkmcnt(0)\ns_barrier\npb_row:')
    a('''s_and_b32 s46, s45, 3
    s_lshr_b32 s47, s46, 1
    s_lshl_b32 s47, s47, 3
    s_lshl_b32 s46, s46, 6
    s_or_b32 s46, s46, s47
    v_xor_b32 v15, s46, v11''')
    for s in range(2):
        for j in range(2):
            a(f'v_xor_b32 v14, {s*65536+j*32768+j*32}, v15')
            for pl in range(2): a(f'ds_read_b64_tr_b16 {vr(X+8*pl+4*s+2*j,2)}, v14 offset:{pl*2048}')
    def cmul(cr,ci,sg):
        for r in range(0,16,2):
            for q in range(2):
                i=r+q; n=sg(i)
                a(f'v_mul_f32 v{O+q}, v{D+i}, v{cr+i}\nv_mul_f32 v{O+2+q}, v{D+16+i}, v{cr+i}')
                a(f'v_fma_f32 v{O+q}, {"-" if n>0 else ""}v{D+16+i}, v{ci+i}, v{O+q}\nv_fma_f32 v{O+2+q}, {"" if n>0 else "-"}v{D+i}, v{ci+i}, v{O+2+q}')
            a(f'v_cvt_pk_bf16_f32 v{X+r//2}, v{O}, v{O+1}\nv_cvt_pk_bf16_f32 v{X+8+r//2}, v{O+2}, v{O+3}')
    a('s_waitcnt lgkmcnt(0)\ns_cmp_lg_u32 s45, 4\ns_cbranch_scc1 pb_6')
    for i in range(8): a(f'v_mov_b32 v{X+i}, 0')
    a('pb_6:')
    cmm(a,D,D+16,X,X+8,C,SP,SN,C)
    a('s_waitcnt vmcnt(0)'); wread()
    cmul(TC,TS,lambda i:-1)
    cmm(a,D,D+16,X,X+8,C,SP,SN,C,False)
    q='row_mask:0xf bank_mask:0xf'
    a(f'''v_add_f32_dpp v{O}, v{WX}, v{WX} quad_perm:[1,0,3,2] {q}
    v_subrev_f32_dpp v{O+1}, v{WX+1}, v{WX+1} quad_perm:[1,0,3,2] {q}
    s_add_u32 s31, s31, 64
    s_cmp_eq_u32 s45, 3
    s_cselect_b32 s31, 1024, s31
    v_mul_f32 v{O}, 0.5, v{O}
    v_mul_f32 v{O+1}, 0.5, v{O+1}
    s_waitcnt lgkmcnt(0)''')
    wload()
    a(f'''v_mov_b32_dpp v{O+2}, v{O} quad_perm:[3,3,3,3] {q}
    v_mov_b32_dpp v{O+3}, v{O+1} quad_perm:[3,3,3,3] {q}
    v_cndmask_b32 v{WR}, v{WR}, v{O}, s[56:57]
    v_cndmask_b32 v{WI}, v{WI}, v{O+1}, s[56:57]
    v_cndmask_b32 v{WR+8}, v{WR+8}, v{O+2}, s[56:57]
    v_cndmask_b32 v{WI+8}, v{WI+8}, v{O+3}, s[56:57]''')
    cmul(WR,WI,lambda i:1 if i<8 else -1)
    cmm(a,D,D+16,X,X+8,C,SN,SP,C)
    cmul(TC,TS,lambda i:1)
    cmm(a,D,D+16,X,X+8,C,SN,SP,C)
    a('v_xor_b32 v15, s46, v12')
    pack(D,X)
    a('s_cmp_eq_u32 s45, 4\ns_cbranch_scc1 pb_3')
    for g in range(4): a(f'v_xor_b32 v14, {16*g}, v15\nds_write_b64 v14, {vr(X+2*g,2)}')
    a('pb_3:\ns_sub_u32 s47, s32, s45\ns_cmp_eq_u32 s47, 5\ns_cbranch_scc1 pb_4')
    for g in range(4): a(f'v_xor_b32 v14, {16*g}, v15\nds_write_b64 v14, {vr(X+8+2*g,2)} offset:2048')
    a('pb_4:\ns_add_u32 s45, s45, 1\ns_cmp_lt_u32 s45, s32\ns_cbranch_scc1 pb_row')
    stamp(a)
    a('''s_add_u32 s47, s2, 1024
    s_cmp_eq_u32 s2, 0
    s_cselect_b32 s46, 32, s2
    s_cselect_b32 s47, 0, s47
    s_cselect_b32 s48, -1, 0
    s_mov_b32 s49, 0
    v_cvt_f32_u32 v11, v5
    v_mul_f32 v11, 0x3a000000, v11
    v_lshl_add_u32 v12, v4, 9, s46
    v_lshl_add_u32 v14, v4, 9, s47
    v_cvt_f32_u32 v12, v12
    v_cvt_f32_u32 v14, v14
    v_mul_f32 v12, v12, v11
    v_mul_f32 v14, v14, v11''')
    def fix():
        a(f'''v_lshlrev_b32 v15, 31, v5
        v_xor_b32 v15, {fx(-2.0**-21)}, v15
        v_mov_b32 v2, {fx(2.0**-21)}
        v_cndmask_b32 v{D+2}, v{D+2}, v2, s[48:49]
        v_cndmask_b32 v{D+4}, v{D+4}, v15, s[48:49]''')
    trig(11,(12,14),lambda s,e:64*e,amp=2.0**-20,fix=fix,dst=(P,R,Q))
    for i in range(8): a(f'v_mov_b32 v{T+i}, v{P+i}')
    a('s_cmp_lg_u32 s2, 0\ns_cbranch_scc1 pb_5')
    for i in range(4):
        a(f'v_mov_b32 v{R+i}, v{P+i}\nv_mov_b32 v{T+i}, v{Q+i}\nv_mov_b32 v{P+i}, 0\nv_mov_b32 v{Q+i}, 0\nv_mov_b32 v{R+4+i}, 0\nv_mov_b32 v{T+4+i}, 0')
    a('''pb_5:
    v_lshlrev_b32 v3, 6, v5
    v_bfe_u32 v14, v5, 1, 2
    v_lshl_add_u32 v3, v14, 4, v3
    v_lshl_add_u32 v3, v4, 3, v3
    v_add_u32 v3, s29, v3
    v_lshrrev_b32 v14, 4, v0
    v_bfe_u32 v15, v0, 2, 2
    v_lshlrev_b32 v11, 17, v14
    v_xor_b32 v14, v14, v15
    v_lshlrev_b32 v6, 12, v15
    v_lshl_add_u32 v6, v14, 6, v6
    v_and_b32 v14, 3, v0
    v_xor_b32 v14, v14, v4
    v_lshl_add_u32 v6, v14, 4, v6
    v_add_u32 v6, s29, v6
    v_xor_b32 v7, 32, v6
    v_and_b32 v14, 15, v0
    v_lshl_add_u32 v11, v14, 4, v11
    s_lshl_b32 s28, s2, 12
    s_lshl_b32 s30, s3, 8
    s_add_u32 s28, s28, s30
    s_waitcnt lgkmcnt(0)
    s_barrier''')
    def srd_i(al):
        for j in range(2):
            a(f'v_xor_b32 v14, {al*64^((2*j^(al>>1))*8)}, v13')
            for pl in range(2):
                for s in range(2): a(f'ds_read_b64_tr_b16 {vr(XB[al&1]+8*pl+4*s+2*j,2)}, v14 offset:{al*4096+pl*2048+s*1024+j*256}')
    def swr_i(al):
        pack(DB[al&1],O)
        for g in range(4):
            a(f'v_xor_b32 v14, {al*64^(g*16)}, v3')
            for pl in range(2): a(f'ds_write_b64 v14, {vr(O+8*pl+2*g,2)} offset:{al*4096+pl*2048}')
    stamp(a); sstage(srd_i,swr_i); stamp(a)
    for hz in range(2):
        for z in range(4*hz,4*hz+4):
            for pl in range(2): a(f'ds_read_b128 {vr(16+8*z+4*pl,4)}, v{6+(z&1)} offset:{pl*2048+z*256}')
        for z in range(4*hz,4*hz+4):
            for pl in range(2): a(f's_waitcnt lgkmcnt({7-2*(z&3)-pl})\nbuffer_store_dwordx4 {vr(16+8*z+4*pl,4)}, v11, s[20:23], s28 offen offset:{pl*2048}{sc}')
            a('s_add_u32 s28, s28, 0x80000')
    if fuse:
        srd(a,84,6,FL_OFF,4096); a('v_mov_b32 v240, 0\ns_lshl_b32 s57, s2, 2\ns_add_u32 s57, s57, 2048')
        return
    stamp(a); stamp_end(a,1)
```

```python
from k1 import *
def k3s(a,NS=4,mp=0,psc=' sc1',order=0,txl=1,late=1,e3=1,tail=0,exp='',fuse=0,hsc='',wsc=''):
    if not fuse: head(a,'k3_kernel')
    TL=NS*32768
    if not fuse:
        a('s_cmp_ge_u32 s2, 256\ns_cbranch_scc1 k3_end'); stamp(a,True)
        a('v_lshrrev_b32 v1, 6, v0\nv_and_b32 v0, 63, v0\nv_readfirstlane_b32 s3, v1')
    a('''    s_load_dwordx2 s[4:5], s[0:1], 0
    s_load_dwordx4 s[36:39], s[0:1], 48
    s_load_dwordx2 s[6:7], s[0:1], 72
    s_and_b32 s47, s2, 1
    s_bfe_u32 s28, s2, 0x10001
    s_lshl_b32 s28, s28, 3
    s_bfe_u32 s29, s2, 0x30003
    s_add_u32 s28, s28, s29
    s_bfe_u32 s29, s2, 0x10002
    s_lshl_b32 s29, s29, 2
    s_lshr_b32 s30, s2, 6
    s_add_u32 s29, s29, s30
    s_lshl_b32 s29, s29, 1
    s_add_u32 s29, s29, s47
    s_lshr_b32 s30, s3, 2
    s_and_b32 s31, s3, 3''')
    if mp: a('s_bfe_u32 s28, s2, 0x20001\ns_lshl_b32 s28, s28, 2\ns_bfe_u32 s29, s2, 0x20003\ns_add_u32 s28, s28, s29\ns_lshr_b32 s29, s2, 5\ns_lshl_b32 s29, s29, 1\ns_add_u32 s29, s29, s47')
    a('s_lshl_b32 s47, s47, 1\ns_add_u32 s47, s47, s30')
    a('''v_lshrrev_b32 v4, 5, v0
    v_bfe_u32 v3, v0, 2, 2
    v_lshl_add_u32 v2, v4, 2, v3
    v_lshlrev_b32 v2, 11, v2
    v_bfe_u32 v3, v0, 4, 1
    v_lshl_add_u32 v2, v3, 6, v2
    v_and_b32 v3, 3, v0
    v_lshl_add_u32 v2, v3, 4, v2
    v_and_b32 v3, 32, v0
    v_xor_b32 v2, v2, v3
    s_lshl_b32 s32, s29, 7
    s_lshl_b32 s33, s31, 15
    s_add_u32 s32, s32, s33
    v_add_u32 v2, s32, v2
    v_add_u32 v5, 0x3c00, v2
    v_lshlrev_b32 v6, 4, v0
    s_lshl_b32 s32, s28, 2
    s_add_u32 s32, s32, s31
    s_mul_i32 s40, s32, 224*1024
    s_mul_i32 s33, s47, 56*1024
    s_add_u32 s40, s40, s33
    s_lshl_b32 s42, s3, 11
    s_lshl_b32 s43, s28, 1
    s_add_u32 s33, s43, s30
    s_lshl_b32 s33, s33, 17''')
    a('''s_lshr_b32 s34, s31, 1
    s_add_u32 s43, s43, s34
    s_and_b32 s35, s31, 1
    s_lshl_b32 s35, s35, 5
    v_and_b32 v8, 15, v0
    v_add_u32 v8, s35, v8
    v_lshrrev_b32 v7, 2, v0
    v_add_u32 v7, s35, v7
    v_lshlrev_b32 v7, 16, v7
    v_and_b32 v3, 3, v0
    v_lshl_add_u32 v7, v3, 4, v7
    s_mov_b32 s46, 0x100000
    s_lshl_b32 s43, s43, 11
    s_lshl_b32 s35, s29, 7
    s_add_u32 s43, s43, s35
    s_lshl_b32 s35, s30, 6
    s_add_u32 s43, s43, s35
    v_add_u32 v7, s43, v7
    s_waitcnt lgkmcnt(0)''')
    srd(a,8,6,H_OFF,2048*3584*2); srd(a,12,6,WD_OFF,3584*2048); srd(a,52,6,A0_OFF,4<<20); srd(a,16,6,T_OFF,4<<20); srd(a,20,4,0,4<<20); srd(a,24,38,0,4<<20)
    a('''s_lshl_b32 s41, s31, 11
    s_mul_i32 s32, s47, 896*128
    s_add_u32 s32, s32, s41
    s_mul_i32 s41, s29, 458752
    s_add_u32 s41, s41, s32
    s_xor_b32 s48, s29, 1
    s_mul_i32 s48, s48, 458752
    s_add_u32 s48, s48, s32
    s_lshl_b32 s49, s2, 3
    s_add_u32 s49, s49, s3
    s_lshl_b32 s49, s49, 11
    s_xor_b32 s50, s49, 0x4000''')
    XV=80; HF=88
    def loads(slot):
        r=[]
        for hf,o in ((1,48),(0,41)):
            r.append(f's_add_u32 m0, s42, {slot*32768+hf*16384}\nbuffer_load_dwordx4 v6, s[12:15], s{o} offen{wsc} lds')
            r.append(f'buffer_load_dwordx4 v6, s[12:15], s{o} offen offset:1024{wsc} lds\ns_add_u32 s{o}, s{o}, 8192')
        for s in range(4):
            r.append(f'buffer_load_dwordx4 {vr(HF+slot*16+4*s,4)}, v6, s[8:11], s40 offen offset:{1024*s}{hsc}'+('\ns_add_u32 s40, s40, 4096' if s==3 else ''))
        return r
    TX=[f's_add_u32 m0, s42, {TL}\nbuffer_load_dwordx4 v2, s[16:19], s33 offen{wsc} lds',f'buffer_load_dwordx4 v5, s[16:19], s33 offen offset:1024{wsc} lds',
        'buffer_load_dwordx4 v[80:83], v7, s[20:23], 0 offen','buffer_load_dwordx4 v[84:87], v7, s[20:23], s46 offen']
    PL=[loads(st) for st in range(NS-1)]
    if not txl: PL[-1]+=TX
    n0=0 if txl else 4
    if fuse:
        a('v_mov_b32 v244, v6'); flag_wait(a,'k3_wa',0,63); a('s_barrier' if fuse==1 else '')
        HL=sum((x[4:] for x in PL),[]); PL=[x[:4] for x in PL]
        if fuse>1: WL=sum(PL,[]); PL=[[],[],[]]
    for st in range(1 if order else NS-1):
        for x in PL.pop(0): a(x)
    a(f'''v_lshrrev_b32 v4, 4, v0
    v_lshlrev_b32 v9, 9, v4
    v_and_b32 v3, 1, v4
    v_lshl_add_u32 v9, v3, 5, v9
    v_bfe_u32 v3, v0, 2, 2
    v_lshl_add_u32 v9, v3, 6, v9
    v_and_b32 v3, 3, v0
    v_lshl_add_u32 v9, v3, 3, v9
    s_lshl_b32 s35, s34, 13
    s_lshl_b32 s44, s30, 8
    s_add_u32 s35, s35, s44
    s_add_u32 s35, s35, {TL}
    v_add_u32 v1, s35, v9
    s_lshl_b32 s35, s30, 13
    v_add_u32 v9, s35, v9
    v_xor_b32 v10, 32, v9''')
    WF=HF+NS*16
    GF=WF+32
    a('v_lshlrev_b32 v4, 1, v4\nv_cvt_f32_u32 v4, v4\nv_cmp_gt_u32 vcc, 16, v0')
    for ph in range(2):
        a(f'''v_add_u32 v11, {16*ph}, v8
        v_cvt_f32_u32 v11, v11
        v_mul_f32 v11, 0x3c800000, v11
        v_mul_f32 v12, v4, v11
        v_add_f32 v13, 0x3e800000, v12''')
        for s in range(2):
            for j in range(2):
                for e2 in range(2):
                    k=16*s+8*j+e2
                    a(f'v_fmamk_f32 v14, v11, {fx(k)}, v12\nv_fmamk_f32 v15, v11, {fx(k)}, v13')
                    if k==0: a('v_mul_f32 v3, 0x42000000, v11\nv_cndmask_b32 v15, v15, v3, vcc')
                    a(f'v_cos_f32 v14, v14\nv_cos_f32 v15, v15\nv_cvt_pk_bf16_f32 v{GF+8*ph+4*s+2*j+e2}, v14, v15')
        if PL:
            for x in PL.pop(0): a(x)
    for i in range(64): a(f'v_mov_b32 v{16+i}, 0')
    BR=GF+16
    a(f'v_add_u32 v{BR}, s44, v9')
    for q in range(1,8): a(f'v_xor_b32 v{BR+q}, {(q&1)*32+(q>>1&1)*256+(q>>2)*65536}, v{BR}')
    a('''s_lshl_b32 s35, s3, 12
    s_add_u32 s35, s35, 65536
    v_add_u32 v11, s35, v6
    v_xor_b32 v12, 0x4000, v11
    v_xor_b32 v10, 32, v1
    s_mov_b32 s56, 0x6f800000
    v_mov_b32 v15, 0x60000000
    s_movk_i32 s58, 0x6000''')
    def rd(slot,u):
        hf,s=1-(u>>1),u&1
        return [f'ds_read_b64_tr_b16 {vr(WF+s*16+nb*8+t*4+j*2,2)}, v{BR+t+2*nb+4*(slot>>1)} offset:{(slot&1)*32768+hf*16384+(8*s+4*j)*512}' for nb in range(2) for t in range(2) for j in range(2)]
    if fuse:
        a('''s_and_b32 s35, s28, 14
        s_and_b32 s59, s2, 1
        s_add_u32 s35, s35, s59
        s_lshl_b32 s35, s35, 7
        v_min_u32 v244, 13, v0
        v_lshl_add_u32 v244, v244, 2, s35
        v_lshlrev_b32 v245, 2, v0
        v_add_u32 v245, 1920, v245
        v_cmp_gt_u32 vcc, 32, v0
        v_cndmask_b32 v244, v245, v244, vcc''')
        stamp(a); a(f's_waitcnt vmcnt({12 if fuse==1 else 0})\ns_barrier'); stamp(a)
        if fuse==4: a(flag_set(a,'k3_f0',1024,245,57)+'\n'+'\n'.join(WL)+'\ns_cmp_lg_u32 s3, 0\ns_cbranch_scc1 k3_fb\nv_mov_b32 v240, 0'); WL=[]
        else: a(flag_set(a,'k3_fb',1024,245,57).replace('k3_fb:','v_mov_b32 v240, 0'))
        flag_wait(a,'k3_wb',1024,63)
        if fuse==3:
            a('s_barrier\n'+'\n'.join(WL)+'\ns_branch k3_h\nk3_fb:\n'+'\n'.join(WL)+'\ns_barrier\nk3_h:')
        else: a('k3_fb:\n'+('\n'.join(WL) if fuse>1 else '')+'\ns_barrier')
        stamp(a)
        for x in HL: a(x)
        a('s_waitcnt vmcnt(8)\ns_barrier'); stamp(a)
    else: stamp(a); a(f's_waitcnt vmcnt({8*(NS-2)+n0})\ns_barrier'); stamp(a)
    for x in rd(0,0): a(x)
    def unit(slot,u,R,L,vm=None,F=[],nbs=(0,1),w=True):
        hf,s=1-(u>>1),u&1; F=list(F)
        if 'prio' in exp: a('s_setprio 0')
        if w: a('s_waitcnt lgkmcnt(0)' if vm is None else f's_waitcnt vmcnt({vm}) lgkmcnt(0)\ns_barrier')
        if 'prio' in exp: a('s_setprio 1')
        for nb in nbs:
            for t in range(2):
                for ph in ((1,0) if 'snake' in exp and t else (0,1)):
                    acc=vr(16+32*hf+16*nb+8*ph+4*t,4)
                    if not R and L and L[0].startswith('s_add_u32 m0'): y=L[0].split('\n'); a(y[0]); L[0]=y[1]
                    a(f'v_mfma_f32_16x16x32_bf16 {acc}, {vr(WF+s*16+nb*8+t*4,4)}, {vr(HF+slot*16+8*s+4*ph,4)}, {acc}')
                    if R: a(R.pop(0)); a(R.pop(0))
                    elif L: a(L.pop(0))
                    if F: a(F.pop(0))
    def stage(slot,L,vm):
        if 'nold' in exp: L=[]; vm=63
        if 'spread' in exp and len(L)==8:
            P=[L[0:3],L[3:6],L[6:8],[]]
            for u in range(4): unit(slot,u,rd(slot,u+1) if u<3 else rd((slot+1)%NS,0),P[u],vm if u==3 else None)
            return
        for u in range(4): unit(slot,u,rd(slot,u+1) if u<3 else rd((slot+1)%NS,0),L,vm if u==3 else None)
        assert not L
    stage(0,loads(3),12 if fuse else 16+n0); stage(1,loads(0),16+n0)
    if St.on and not fuse: a('s_memtime s[90:91]'); stamp(a)
    a(f's_mov_b32 s45, 2\nk3_loop:')
    for u in range(NS): stage((u+2)%NS,loads((u+1)%NS),16)
    a('s_sub_u32 s45, s45, 1\ns_cmp_lg_u32 s45, 0\ns_cbranch_scc1 k3_loop')
    if St.on and not fuse: a('s_memtime s[88:89]'); stamp(a); a('s_sub_u32 s88, s88, s90')
    stage(2,loads(1),16)
    TF=HF+48; SA=HF+32
    WR=[f'ds_write_b128 v11, {vr(64+4*i,4)} offset:{1024*i}' for i in range(4)]; RD=[f'ds_read_b128 {vr(64+4*i,4)}, v12 offset:{1024*i}' for i in range(4)]
    F=[]
    for i in range(2):
        r=48+8*i
        F.append('\n'.join(f'v_add_f32 v{q}, v{q}, v{q+16}' for q in range(r,r+4)))
        F.append('\n'.join(f'v_add_f32 v{q}, v{q}, v{q+16}' for q in range(r+4,r+8)))
        F.append(f'v_mul_f32 v{r}, s56, v{r}\nv_cmp_lt_f32 vcc, |v{r}|, v15\nv_cvt_pk_bf16_f32 v{r+17}, v{r+2}, v{r+3}\nv_cndmask_b32 v{r}, v{r}, v15, vcc')
        F.append(f'v_cvt_pk_bf16_f32 v{r+18}, v{r+4}, v{r+5}\nv_cvt_pk_bf16_f32 v{r+19}, v{r+6}, v{r+7}\nv_cvt_pk_bf16_f32 v{r+16}, v{r}, v{r+1}\nbuffer_store_dwordx4 {vr(r+16,4)}, v6, s[52:55], s50 offen offset:{1024*i} sc1')
    TR=[f'ds_read_b64_tr_b16 {vr(TF+8*t+4*s+2*j,2)}, v{1+9*t} offset:{(8*s+4*j)*512}' for t in range(2) for s in range(2) for j in range(2)]
    PO=[f'buffer_load_dwordx4 {vr(56+4*i,4)}, v6, s[52:55], s49 offen offset:{1024*i}{psc}' for i in range(2)]
    W2=[f'ds_write_b128 v11, {vr(32+4*i,4)} offset:{32768+1024*i}' for i in (0,2,1,3)]; R2=[f'ds_read_b128 {vr(32+4*i,4)}, v12 offset:{32768+1024*i}' for i in range(4)]
    def phc(L):
        for s in range(2):
            for ph in range(2):
                for t in range(2):
                    acc=vr(SA+8*ph+4*t,4); a(f'v_mfma_f32_16x16x32_bf16 {acc}, {vr(TF+8*t+4*s,4)}, {vr(GF+8*ph+4*s,4)}, {"0" if s==0 else acc}')
                    if s==1 and L: a(L.pop(0))
    unit(3,0,rd(3,1),list(TX)); unit(3,1,rd(0,0),[],12)
    unit(0,0,rd(0,1),[]); unit(0,1,rd(1,0),[],4); unit(1,0,rd(1,1),[])
    unit(1,1,rd(3,2),[]); unit(3,2,rd(3,3),WR); unit(3,3,RD+rd(0,2),[],0); unit(0,2,rd(0,3),[],None,F)
    if tail:
        unit(0,3,rd(1,2)+TR,[]); unit(1,2,rd(1,3),[],nbs=(1,))
        if tail==1: phc([]); unit(1,3,[],[],nbs=(1,)); unit(1,2,[],W2,nbs=(0,),w=False); unit(1,3,R2+PO,[],63,nbs=(0,))
        else: unit(1,2,[],[],nbs=(0,),w=False); unit(1,3,[],[],nbs=(1,)); unit(1,3,[],W2,nbs=(0,),w=False); a('s_waitcnt lgkmcnt(0)\ns_barrier\n'+'\n'.join(R2+PO)); phc([])
        stamp(a)
    else:
        unit(0,3,rd(1,2),[]); unit(1,2,rd(1,3),[]); unit(1,3,TR,[])
        stamp(a)
        a('s_waitcnt lgkmcnt(0)'); phc(W2)
        a('s_waitcnt lgkmcnt(0)\ns_barrier\n'+'\n'.join(R2+PO))
    a('''s_mul_i32 s35, s3, 2560
    s_add_u32 s35, s35, 32768
    v_and_b32 v13, 15, v0
    v_mul_u32_u24 v13, 80, v13
    v_lshrrev_b32 v14, 4, v0
    v_lshl_add_u32 v13, v14, 3, v13
    v_add_u32 v13, s35, v13
    v_lshrrev_b32 v14, 2, v0
    v_mul_u32_u24 v14, 80, v14
    v_and_b32 v3, 3, v0
    v_lshl_add_u32 v14, v3, 4, v14
    v_add_u32 v14, s35, v14''')
    a('s_waitcnt lgkmcnt(0)')
    for i in range(16): a(f'v_add_f32 v{16+i}, v{16+i}, v{32+i}')
    a('''s_mov_b32 s51, 0x40000
    k3_poll:
    s_waitcnt vmcnt(0)
    v_and_b32 v3, v56, v60
    v_and_b32 v3, s58, v3
    v_cmp_ne_u32 vcc, s58, v3
    s_sub_u32 s51, s51, 1
    s_cbranch_scc1 k3_got
    s_cbranch_vccz k3_got''')
    for x in PO: a(x)
    a('s_branch k3_poll\nk3_got:')
    for i in range(8): a(f'v_lshlrev_b32 v{64+2*i}, 16, v{56+i}\nv_and_b32 v{65+2*i}, 0xffff0000, v{56+i}')
    a('v_mul_f32 v64, 0x0f800000, v64\nv_mul_f32 v72, 0x0f800000, v72')
    for pp in range(2):
        R=range(8*pp,8*pp+8)
        for i in R: a(f'v_add_f32 v{16+i}, v{16+i}, v{64+i}')
        for i in R: a(f'v_mul_f32 v{32+i}, 0xbfb8aa3b, v{16+i}')
        for i in R: a(f'v_exp_f32 v{32+i}, v{32+i}')
        for i in R: a(f'v_add_f32 v{32+i}, 1.0, v{32+i}')
        for i in R: a(f'v_rcp_f32 v{32+i}, v{32+i}')
        for i in R: a(f'v_mul_f32 v{16+i}, v{16+i}, v{SA+i}')
        for i in R: a(f'v_mul_f32 v{16+i}, v{16+i}, v{32+i}')
        d=48+4*pp
        for j in range(4): a(f'v_cvt_pk_bf16_f32 v{d+j}, v{16+8*pp+2*j}, v{17+8*pp+2*j}')
        for t in range(2): a(f'ds_write_b64 v13, {vr(d+2*t,2)} offset:{pp*1280+t*32}')
        a(f'ds_read_b128 {vr(HF+4*pp,4)}, v14 offset:{pp*1280}')
    for pp in range(2):
        a(f's_waitcnt lgkmcnt({3-3*pp})')
        for j in range(4):
            x=XV+4*pp+j; d=HF+4*pp+j
            a(f'''v_lshlrev_b32 v16, 16, v{x}
            v_and_b32 v17, 0xffff0000, v{x}
            v_lshlrev_b32 v18, 16, v{d}
            v_and_b32 v19, 0xffff0000, v{d}
            v_add_f32 v16, v16, v18
            v_add_f32 v17, v17, v19
            v_cvt_pk_bf16_f32 v{x}, v16, v17''')
        a(f'buffer_store_dwordx4 {vr(XV+4*pp,4)}, v7, s[24:27], {"s46" if pp else 0} offen')
    stamp_end(a,1 if fuse else 2,cyc=True)
    a('k3_end:\ns_endpgm')
    return BR+8, TL+16384
```

```python
from gen import *
W1=((3,4,5,6),(7,8,9,10)); W2=((4,6,8,10),(11,12,13,14)); W3=((8,10,12,14),(15,16,17,18))
def D(**kw):
    d={k:dict(v) for k,v in DEF.items()}
    for k,v in kw.items(): d.setdefault(k,{}).update(v)
    return d
F=dict(fuse=1)
Z=dict(fuse=0)
P=dict(one=1,pf=256,pfst=(3,4,5,6,7,9))
V=dict(
a=D(k1=dict(one=1),k2=dict(one=1)),
b=D(k1=dict(one=3),k2=dict(one=1)),
c=D(k1=dict(one=3,rows=256),k2=P),
d=D(k1=dict(one=1,rows=256),k2=P),
e=D(k1=dict(one=4,rows=256),k2=P),
f=D(k1=dict(one=3,rows=0),k2=P),
)
for k,v in V.items(): build(f'v_{k}.s',**v); build(f'stamp_{k}.s',**v)
```

```python
from k1 import *
M32='v_mfma_f32_32x32x16_bf16'
def k2(a,NS=4,fft=True,pf=True,sc='',exp='snake',wd=None,wsc='',pfst=None,roll=None,fill=None,fuse=0,early=0,one=0,wfirst=0):
    xsc=' sc1' if one else ''
    if not one:
        head(a,'k2_kernel'); a('s_cmp_ge_u32 s2, 256\ns_cbranch_scc1 k2_end'); stamp(a,True)
        a('v_lshrrev_b32 v1, 6, v0\nv_and_b32 v0, 63, v0\nv_readfirstlane_b32 s3, v1')
    a('''    s_load_dwordx4 s[36:39], s[0:1], 32
    s_load_dwordx4 s[40:43], s[0:1], 8
    s_load_dwordx2 s[48:49], s[0:1], 48
    s_load_dwordx2 s[6:7], s[0:1], 72
    s_cmp_lt_u32 s2, 32
    s_cbranch_scc1 k2_fft
    s_lshr_b32 s30, s2, 3
    s_sub_u32 s30, s30, 4
    s_and_b32 s28, s2, 1
    s_lshl_b32 s28, s28, 2
    s_and_b32 s31, s30, 3
    s_add_u32 s28, s28, s31
    s_bfe_u32 s29, s2, 0x20001
    s_mul_i32 s29, s29, 7
    s_lshr_b32 s31, s30, 2
    s_add_u32 s29, s29, s31
    v_lshlrev_b32 v2, 4, v0
    v_bfe_u32 v4, v0, 2, 2
    v_mul_u32_u24 v3, 7168, v4
    v_lshrrev_b32 v4, 4, v0
    v_lshl_add_u32 v3, v4, 6, v3
    v_and_b32 v4, 3, v0
    s_and_b32 s32, s3, 2
    v_xor_b32 v4, s32, v4
    v_lshl_add_u32 v3, v4, 4, v3
    s_lshl_b32 s32, s28, 3
    s_add_u32 s32, s32, s3
    s_lshl_b32 s32, s32, 16
    s_mul_i32 s33, s3, 4*7168
    s_lshl_b32 s34, s29, 8
    s_add_u32 s33, s33, s34
    s_lshl_b32 s34, s3, 11
    s_lshl_b32 s35, s3, 10
    s_sub_u32 s34, s34, 0x400
    s_waitcnt lgkmcnt(0)''')
    srd(a,8,6,XN_OFF,4<<20); srd(a,12,36,0,7168*1024); srd(a,16,38,0,7168*1024); srd(a,20,6,H_OFF,2048*3584*2)
    def loads(slot):
        o=slot*32768
        return [f's_add_u32 m0, s35, {o+16384}\nbuffer_load_dwordx4 v3, s[12:15], s33 offen lds',
                f's_add_u32 m0, s35, {o+24576}\nbuffer_load_dwordx4 v3, s[16:19], s33 offen lds\ns_add_u32 s33, s33, 32*7168',
                f's_add_u32 m0, s34, {o+1024}\nbuffer_load_dwordx4 v2, s[8:11], s32 offen{xsc} lds',
                f'buffer_load_dwordx4 v2, s[8:11], s32 offen offset:1024{xsc} lds\ns_add_u32 s32, s32, 2048']
    if one:
        if not wfirst: first_wait(a,'k2_wc',0)
        for st in range(NS): a('\n'.join(loads(st)[:2]))
        if wfirst: first_wait(a,'k2_wc',0)
        a('s_barrier')
    for st in range(NS):
        for x in loads(st)[2 if one else 0:]: a(x)
    if fuse: srd(a,84,6,FL_OFF,4096); sc=wsc=' sc1'
    NPF=0
    a('s_sub_u32 s46, s2, 32\ns_lshl_b32 s46, s46, 3\ns_add_u32 s46, s46, s3')
    srd(a,24,48,0,3584*2048)
    if wd:
        srd(a,52,6,WD_OFF,3584*2048)
        a('''s_lshr_b32 s50, s46, 2
        s_and_b32 s51, s46, 3
        s_lshl_b32 s56, s50, 14
        s_lshl_b32 s47, s51, 9
        s_add_u32 s56, s56, s47
        s_lshl_b32 s50, s50, 10
        s_mul_i32 s51, s51, 4*458752
        s_add_u32 s57, s50, s51
        v_lshrrev_b32 v4, 5, v0
        v_bfe_u32 v14, v0, 2, 2
        v_lshl_add_u32 v14, v4, 2, v14
        v_lshlrev_b32 v14, 11, v14
        v_bfe_u32 v4, v0, 4, 1
        v_lshl_add_u32 v14, v4, 6, v14
        v_and_b32 v4, 3, v0
        v_lshl_add_u32 v14, v4, 4, v14
        v_and_b32 v4, 32, v0
        v_xor_b32 v14, v14, v4''')
    if pf:
        r0=128 if pf is True else pf; per=(1024-r0)*4
        a(f's_mul_i32 s47, s46, {per}\ns_add_u32 s47, s47, {r0*7168}')
        PF=[f'buffer_load_dwordx4 v[116:119], v2, {sr(d,4)}, s47 offen offset:{min(o,per-1024)}' for d in (12,16) for o in range(0,per,1024)]
        if not pfst:
            for x in PF: a(x)
            NPF=len(PF)
    a('''s_lshl_b32 s46, s46, 12
    s_and_b32 s30, s3, 3
    s_lshr_b32 s31, s3, 2
    v_lshrrev_b32 v4, 4, v0
    v_lshlrev_b32 v8, 11, v4
    v_and_b32 v4, 1, v4
    v_lshl_add_u32 v8, v4, 5, v8
    v_bfe_u32 v4, v0, 2, 2
    v_lshl_add_u32 v8, v4, 6, v8
    v_and_b32 v4, 3, v0
    v_lshl_add_u32 v8, v4, 3, v8
    s_lshl_b32 s44, s30, 8
    s_add_u32 s44, s44, 16384
    v_add_u32 v8, s44, v8
    s_lshl_b32 s44, s31, 13
    v_add_u32 v5, s44, v2
    v_add_u32 v6, 0x10000, v5
    v_add_u32 v7, 0x20000, v5
    v_add_u32 v9, 0x10000, v8
    v_add_u32 v10, 0x20000, v8
    v_xor_b32 v11, 32, v8
    v_xor_b32 v12, 32, v9
    v_xor_b32 v13, 32, v10''')
    ACC=128; XF=16; WFR=48
    for i in range(128): a(f'v_accvgpr_write_b32 a{i}, 0' if 'agpr' in exp else f'v_mov_b32 v{ACC+i}, 0')
    def rdx(slot,hf):
        return [f'ds_read_b128 {vr(XF+16*hf+4*i,4)}, v{5+slot//2} offset:{(slot&1)*32768+(4*hf+i)*1024}' for i in range(4)]
    def rdw(slot,buf):
        return [f'ds_read_b64_tr_b16 {vr(WFR+16*buf+8*mat+4*t+2*j,2)}, v{8+3*t+slot//2} offset:{(slot&1)*32768+mat*8192+j*1024}' for mat in range(2) for t in range(2) for j in range(2)]
    def mm(hf,buf,F):
        n=0
        for i0 in range(4):
            for c0 in range(4):
                i,c=i0,c0
                if 'snake' in exp and i0&1: c=3-c0
                if 'swap' in exp: i,c=c,i
                acc=vr(ACC+(4*hf+i)*16+4*c,4)
                if 'agpr' in exp: acc='a[%d:%d]'%((4*hf+i)*16+4*c,(4*hf+i)*16+4*c+3)
                a(f'v_mfma_f32_16x16x32_bf16 {acc}, {vr(WFR+16*buf+4*c,4)}, {vr(XF+16*hf+4*i,4)}, {acc}')
                if n in F: a(F[n])
                n+=1
    stamp(a); a(f's_waitcnt vmcnt({6 if one else 4*(NS-1)+NPF})\ns_barrier'); stamp(a)
    for x in rdw(0,0)+rdx(0,0): a(x)
    EP0='''s_lshl_b32 s32, s28, 3
    s_lshl_b32 s33, s31, 2
    s_add_u32 s32, s32, s33
    s_mul_i32 s32, s32, 112
    s_lshl_b32 s33, s29, 2
    s_add_u32 s32, s32, s33
    s_add_u32 s32, s32, s30
    s_lshl_b32 s32, s32, 11'''+('\nbuffer_load_dwordx4 v[116:119], v2, s[84:87], 0 offen sc1' if fuse else '')
    def epi(pt):
        g=ACC+pt*16; d=80+pt*4
        m=[f'v_mul_f32 v{g+i}, v{g+i}, v{g+8+i}' for i in range(8)]+[f'v_cvt_pk_bf16_f32 v{d+j}, v{g+2*j}, v{g+2*j+1}' for j in range(4)]
        m[11]+=f'\nbuffer_store_dwordx4 {vr(d,4)}, v2, s[20:23], s32 offen offset:{1024*(pt&1)}{sc}'+('\ns_add_u32 s32, s32, 224*1024' if pt&1 else '')
        return ['\n'.join(m[3*k:3*k+3]) for k in range(4)]
    def stage(st,ld,last,vm,extra=[],x15=None):
        slot=st%NS; buf=st&1
        F=dict(enumerate(rdx(slot,1))) if ('noread' not in exp or st==0) else {}
        if 'nodma' in exp: ld=False; vm=63
        for i,x in enumerate(loads((slot-1)%NS) if ld else extra):
            y=x.split('\n')
            if y[0].startswith('s_add_u32 m0'): F[4+3*i]=y[0]; y=y[1:]
            F[5+3*i]='\n'.join(y)
        if x15: F[15]=x15
        a('s_waitcnt lgkmcnt(0)')
        mm(0,buf,F)
        a('s_waitcnt lgkmcnt(0)' if last else f's_waitcnt vmcnt({vm}) lgkmcnt(0)\ns_barrier')
        if last and early: a(EP0)
        mm(1,buf,(dict(enumerate(sum((epi(p) for p in range(4)),[]))) if early else {}) if last else dict(enumerate(rdw((slot+1)%NS,buf^1)+rdx((slot+1)%NS,0))))
    nst=32; U=NS if NS%2==0 else 2*NS
    pre=NS-1; nloop=(nst-NS+1-pre)//U
    XR={}; XN={}
    if roll:
        R0,PRE=roll
        a(f's_lshr_b32 s47, s46, 3\ns_add_u32 s47, s47, {R0*7168}\nv_lshlrev_b32 v15, 3, v0\ns_add_u32 s58, s56, 384\ns_add_u32 s59, s57, 3*458752')
        g='buffer_load_dwordx2 v[116:117], v15, s[12:15], s47 offen'; u='buffer_load_dwordx2 v[116:117], v15, s[16:19], s47 offen\ns_add_u32 s47, s47, 128*7168'
        l='buffer_load_dwordx4 v[96:99], v14, s[24:27], s56 offen\ns_add_u32 s56, s56, 128\ns_min_u32 s56, s56, s58'
        if PRE: XR[0]=g; XR[1]=u
        XR[2]=l
        for j in range(nloop): XR[3+4*j]=g; XR[5+4*j]=u; XR[6+4*j]=f'buffer_store_dwordx4 v[96:99], v2, s[52:55], s57 offen{wsc}\ns_add_u32 s57, s57, 458752\ns_min_u32 s57, s57, s59\n'+l
        XN={k:v.count('buffer') for k,v in XR.items()}
    xn=lambda st: sum(XN.get(j,0) for j in range(st-2,st+1))
    for st in range(pre): stage(st,st>0,False,4+2*st if one else 4*(NS-2)+NPF+xn(st),x15=XR.get(st))
    if St.on: a('s_memtime s[90:91]'); stamp(a); St.n-=one
    if wd and not roll:
        X={}
        for i in range(4):
            X[wd[0][i]]=f'buffer_load_dwordx4 {vr(96+4*i,4)}, v14, s[24:27], s56 offen offset:{128*i}'
            X[wd[1][i]]=f'buffer_store_dwordx4 {vr(96+4*i,4)}, v2, s[52:55], s57 offen{wsc}\ns_add_u32 s57, s57, 458752'
            assert wd[1][i]>=wd[0][i]+4
        if fill:
            srd(a,80,6,XC_OFF,1792*5120); a('s_lshr_b32 s84, s46, 2\ns_add_u32 s84, s84, s46')
            for i in range(4): a(f'v_mov_b32 v{112+i}, -1')
            for i,st in enumerate(fill): X[st]=X.get(st,'')+f'\nbuffer_store_dwordx4 v[112:115], v2, s[80:83], s84 offen sc1\ns_add_u32 s84, s84, 1024'
        if pfst:
            for st,x in zip(pfst,PF): assert st not in X; X[st]=x
        if 'nox' in exp: X={max(X):'s_nop 0'}
        if fuse: assert fuse>=max(wd[1])+4 and fuse not in X; X[fuse]=flag_set(a,'k2_fa',0,120)
        nb=(max(X)+1-pre+U-1)//U
        for st in range(pre,pre+nb*U): stage(st,True,False,4*(NS-2)+sum(X.get(j,'').count('dwordx4') for j in range(st-2,st+1)),x15=X.get(st))
        pre+=nb*U; nloop-=nb
    a(f's_mov_b32 s45, {nloop}\nk2_loop:')
    for u in range(U): stage(pre+u,True,False,4*(NS-2)+min(xn(pre+u),xn(pre+u+U)),x15=XR.get(pre+u))
    a('s_sub_u32 s45, s45, 1\ns_cmp_lg_u32 s45, 0\ns_cbranch_scc1 k2_loop')
    if St.on: a('s_memtime s[88:89]'); stamp(a); a('s_sub_u32 s88, s88, s90')
    for st in range(pre+nloop*U,nst):
        left=nst-1-st
        ex=[f'buffer_load_dwordx4 v[116:119], v2, s[24:27], s46 offen offset:{1024*i}' for i in range(4)] if (not wd and left==1) else []
        stage(st,left>=NS-1,left==0,4*max(0,min(NS-2,left-1))+len(ex)+(xn(st) if left>=NS-1 else 0),ex)
    stamp(a)
    if not early: a(EP0)
    for pt in range(4 if early else 0,8):
        for x in epi(pt): a(x)
    if fuse:
        a('s_cmp_ge_u32 s29, 14\ns_cselect_b32 s57, 128-56, 0\ns_lshl_b32 s28, s28, 8\ns_lshl_b32 s29, s29, 2\ns_add_u32 s57, s57, s28\ns_add_u32 s57, s57, s29\ns_waitcnt vmcnt(8)')
        for i in range(4): a(f'v_mov_b32 v{240+i}, v{116+i}')
        a('s_branch k3_in\nk2_end:\ns_endpgm\nk2_fft:'); St.n=1
        if one: first_wait(a,'k2_wd',1); a('s_barrier')
        phaseB(a,1); a('k3_in:'); St.n=6
        return 256, 163840
    stamp(a); stamp_end(a,1,1,True)
    a('s_endpgm\nk2_fft:')
    if fft: phaseB(a)
    a('k2_end:\ns_endpgm')
    return 256, 163840
def cmm(a,dre,dim,xre,xim,P,Q,R,T,dataA=True):
    def one(d,x,c,first):
        o=(vr(x,4),vr(c,4)) if dataA else (vr(c,4),vr(x,4))
        a(f'{M32} {vr(d,16)}, {o[0]}, {o[1]}, {"0" if first else vr(d,16)}')
    for s in range(2): one(dre,xre+4*s,P+4*s,s==0)
    for s in range(2): one(dre,xim+4*s,Q+4*s,False)
    for s in range(2): one(dim,xre+4*s,R+4*s,s==0)
    for s in range(2): one(dim,xim+4*s,T+4*s,False)
def phaseB(a,fuse=0):
    sc=' sc1' if fuse else ''
    P,Q,R,T=16,24,32,40; C,SP,SN=48,56,64; TC,TS=72,88; X=104; D=120; WR,WI=152,168; WX=184; X2=188; D2=204
    a('s_waitcnt lgkmcnt(0)')
    srd(a,8,6,A0_OFF,4<<20); srd(a,12,40,0,2048*1026); srd(a,16,42,0,2048*1026); srd(a,20,6,T_OFF,4<<20)
    a('''v_lshrrev_b32 v2, 2, v0
    v_lshlrev_b32 v2, 11, v2
    v_and_b32 v3, 3, v0
    v_lshl_add_u32 v2, v3, 4, v2
    s_lshl_b32 s28, s2, 17
    s_lshl_b32 s29, s3, 8
    s_add_u32 s28, s28, s29
    s_lshl_b32 s29, s3, 14''')
    for al in range(4):
        for pl in range(2):
            for u in range(2):
                a(f's_add_u32 m0, s29, {al*4096+pl*2048+u*1024}\ns_add_u32 s30, s28, {pl*65536+u*32768+al*64}\nbuffer_load_dwordx4 v2, s[8:11], s30 offen{sc} lds')
    a('''v_lshrrev_b32 v4, 5, v0
    v_and_b32 v5, 31, v0
    v_lshlrev_b32 v6, 1, v5
    v_lshl_add_u32 v6, v4, 8, v6
    v_sub_u32 v7, 320, v6
    s_lshl_b32 s50, s3, 12
    s_add_u32 s50, s50, 131072
    s_and_b32 s51, s2, 1
    s_lshl_b32 s51, s51, 1
    s_sub_u32 s52, s50, s51
    v_add_u32 v7, s52, v7
    s_add_u32 s52, s52, 2048
    v_add_u32 v6, s52, v6
    v_lshlrev_b32 v8, 4, v0
    v_add_u32 v8, s51, v8
    v_and_b32 v9, 2, v0
    v_lshlrev_b32 v9, 9, v9
    v_and_b32 v10, 1, v0
    v_cmp_eq_u32 s[54:55], 1, v10
    s_mov_b64 s[56:57], 1
    s_lshl_b32 s31, s3, 8
    s_add_u32 s31, s31, s2
    s_mov_b32 s32, 4
    s_cmp_lg_u32 s2, 0
    s_cbranch_scc1 pb_0
    s_add_u32 s31, s31, 32
    s_cmp_lt_u32 s3, 4
    s_cbranch_scc1 pb_0
    s_sub_u32 s31, s31, 1056
    s_cmp_lg_u32 s3, 4
    s_cbranch_scc1 pb_0
    s_mov_b32 s32, 5
    pb_0:''')
    def wload():
        a('''s_sub_u32 s34, 2048, s31
        s_and_b32 s34, s34, 2047
        s_mul_i32 s33, s31, 1026
        s_mul_i32 s34, s34, 1026''')
        for i,(row,d) in enumerate(((34,12),(34,16),(33,12),(33,16))):
            a(f's_add_u32 m0, s50, {1024*i}\nbuffer_load_dwordx4 v8, {sr(d,4)}, s{row} offen lds')
        a(f'''v_add_u32 v10, s33, v9
        v_add_u32 v{WX+2}, s34, v9
        v_cndmask_b32 v10, v10, v{WX+2}, s[54:55]
        buffer_load_short_d16_hi v{WX}, v10, s[12:15], 0 offen
        buffer_load_short_d16_hi v{WX+1}, v10, s[16:19], 0 offen''')
    def wread():
        for r in range(16):
            for w,pl in ((WR,0),(WI,1)):
                if r<8: a(f'ds_read_u16_d16_hi v{w+r}, v6 offset:{pl*1024+(r&3)*64+(r>>2)*512}')
                else: a(f'ds_read_u16_d16_hi v{w+r}, v7 offset:{pl*1024+(3-(r&3))*64+(3-(r>>2))*512}')
    for i in range(36): a(f'v_mov_b32 v{WR+i}, 0')
    wload()
    def trig(step,base,kf,amp=None,fix=None,dst=(C,SP,SN)):
        for s in range(2):
            for e in range(0,8,2):
                b=base[s] if isinstance(base,tuple) else base
                a(f'v_fmamk_f32 v{D}, v{step}, {fx(kf(s,e))}, v{b}\nv_fmamk_f32 v{D+1}, v{step}, {fx(kf(s,e+1))}, v{b}')
                a(f'v_cos_f32 v{D+2}, v{D}\nv_cos_f32 v{D+3}, v{D+1}\nv_sin_f32 v{D+4}, v{D}\nv_sin_f32 v{D+5}, v{D+1}')
                if amp:
                    for i in range(2,6): a(f'v_mul_f32 v{D+i}, {fx(amp)}, v{D+i}')
                if fix and s==1 and e==0: fix()
                i=4*s+e//2
                a(f'v_cvt_pk_bf16_f32 v{dst[0]+i}, v{D+2}, v{D+3}\nv_cvt_pk_bf16_f32 v{dst[1]+i}, v{D+4}, v{D+5}\nv_xor_b32 v{dst[2]+i}, 0x80008000, v{dst[1]+i}')
    a('''v_lshlrev_b32 v11, 6, v5
    v_add_u32 v11, s2, v11
    s_cmp_lg_u32 s2, 0
    s_cbranch_scc1 pb_1
    v_add_u32 v12, 32, v11
    v_subrev_u32 v11, 1024, v11
    v_cmp_gt_u32 vcc, 16, v5
    v_cndmask_b32 v11, v11, v12, vcc
    pb_1:
    v_cvt_f32_u32 v11, v11
    v_mul_f32 v11, 0x3a000000, v11
    v_lshlrev_b32 v12, 3, v4
    v_cvt_f32_u32 v12, v12
    v_mul_f32 v12, v12, v11''')
    trig(11,12,lambda s,e:16*s+e,dst=(P,Q,R))
    for i in range(8): a(f'v_mov_b32 v{T+i}, v{P+i}')
    a('s_cmp_lg_u32 s2, 0\ns_cbranch_scc1 pb_2\nv_cmp_gt_u32 vcc, 16, v5\nv_cmp_eq_u32 s[46:47], 16, v5\nv_mov_b32 v13, 0xbf803f80')
    for i in range(8):
        a(f'''v_cndmask_b32 v{Q+i}, 0, v{P+i}, vcc
        v_cndmask_b32 v{T+i}, 0, v{R+i}, vcc
        v_cndmask_b32 v{P+i}, v{P+i}, 0, vcc
        v_cndmask_b32 v{R+i}, v{R+i}, 0, vcc
        v_cndmask_b32 v{R+i}, v{R+i}, v13, s[46:47]''')
    a('pb_2:')
    a('''v_cvt_f32_u32 v11, v5
    v_mul_f32 v11, 0x3d000000, v11
    v_lshlrev_b32 v12, 2, v4
    v_cvt_f32_u32 v12, v12
    v_mul_f32 v12, v12, v11''')
    trig(11,12,lambda s,e:16*s+(e&3)+8*(e>>2))
    a('v_mul_f32 v11, 0x3d000000, v11\nv_mul_f32 v12, 0x3d000000, v12')
    for r in range(16):
        a(f'v_fmamk_f32 v{D}, v11, {fx((r&3)+8*(r>>2))}, v12\nv_cos_f32 v{TC+r}, v{D}\nv_sin_f32 v{TS+r}, v{D}')
    trlane(a,2,0,14,512)
    a('''v_add_u32 v2, s29, v2
    s_lshl_b32 s30, s3, 4
    s_and_b32 s30, s30, 0x30
    s_or_b32 s35, s30, s29
    v_lshlrev_b32 v3, 6, v5
    v_bfe_u32 v14, v5, 1, 3
    v_xor_b32 v14, v14, v4
    v_lshl_add_u32 v3, v14, 3, v3
    v_and_b32 v12, 0xff, v3
    v_xor_b32 v3, s35, v3
    v_lshl_add_u32 v12, v5, 12, v12
    s_lshl_b32 s44, s3, 8
    s_or_b32 s44, s44, s30
    v_xor_b32 v12, s44, v12
    v_bfe_u32 v14, v0, 3, 1
    v_lshl_add_u32 v15, v4, 2, v14
    v_lshlrev_b32 v15, 3, v15
    v_xor_b32 v13, v2, v15
    v_xor_b32 v13, s30, v13
    v_lshl_add_u32 v15, v4, 1, v14
    v_lshlrev_b32 v15, 3, v15
    v_and_b32 v11, 0xff, v2
    v_xor_b32 v11, v11, v15
    v_bfe_u32 v14, v0, 2, 2
    v_lshl_add_u32 v14, v4, 2, v14
    v_lshl_add_u32 v11, v14, 12, v11
    v_xor_b32 v11, s44, v11''')
    def pack(d,x):
        for i in range(16): a(f'v_cvt_pk_bf16_f32 v{x+i}, v{d+2*i}, v{d+2*i+1}')
    XB=(X,X2); DB=(D,D2); O=236
    def srd_f(al):
        a(f's_waitcnt vmcnt({6+4*(3-al)})')
        for pl in range(2):
            for s in range(2):
                for j in range(2): a(f'ds_read_b64_tr_b16 {vr(XB[al&1]+8*pl+4*s+2*j,2)}, v2 offset:{al*4096+pl*2048+s*1024+j*256}')
    def swr_f(al):
        pack(DB[al&1],O)
        for g in range(4):
            a(f'v_xor_b32 v14, {al*64^((2*g^(al>>1))*8)}, v3')
            for pl in range(2): a(f'ds_write_b64 v14, {vr(O+8*pl+2*g,2)} offset:{al*4096+pl*2048}')
    def sstage(rdf,wrf):
        rdf(0)
        for al in range(4):
            a('s_waitcnt lgkmcnt(0)')
            if al<3: rdf(al+1)
            cmm(a,DB[al&1],DB[al&1]+16,XB[al&1],XB[al&1]+8,P,Q,R,T)
            if al>0: wrf(al-1)
        wrf(3)
    stamp(a); sstage(srd_f,swr_f); stamp(a)
    a('s_mov_b32 s45, 0\ns_waitcnt lgkmcnt(0)\ns_barrier\npb_row:')
    a('''s_and_b32 s46, s45, 3
    s_lshr_b32 s47, s46, 1
    s_lshl_b32 s47, s47, 3
    s_lshl_b32 s46, s46, 6
    s_or_b32 s46, s46, s47
    v_xor_b32 v15, s46, v11''')
    for s in range(2):
        for j in range(2):
            a(f'v_xor_b32 v14, {s*65536+j*32768+j*32}, v15')
            for pl in range(2): a(f'ds_read_b64_tr_b16 {vr(X+8*pl+4*s+2*j,2)}, v14 offset:{pl*2048}')
    def cmul(cr,ci,sg):
        for r in range(0,16,2):
            for q in range(2):
                i=r+q; n=sg(i)
                a(f'v_mul_f32 v{O+q}, v{D+i}, v{cr+i}\nv_mul_f32 v{O+2+q}, v{D+16+i}, v{cr+i}')
                a(f'v_fma_f32 v{O+q}, {"-" if n>0 else ""}v{D+16+i}, v{ci+i}, v{O+q}\nv_fma_f32 v{O+2+q}, {"" if n>0 else "-"}v{D+i}, v{ci+i}, v{O+2+q}')
            a(f'v_cvt_pk_bf16_f32 v{X+r//2}, v{O}, v{O+1}\nv_cvt_pk_bf16_f32 v{X+8+r//2}, v{O+2}, v{O+3}')
    a('s_waitcnt lgkmcnt(0)\ns_cmp_lg_u32 s45, 4\ns_cbranch_scc1 pb_6')
    for i in range(8): a(f'v_mov_b32 v{X+i}, 0')
    a('pb_6:')
    cmm(a,D,D+16,X,X+8,C,SP,SN,C)
    a('s_waitcnt vmcnt(0)'); wread()
    cmul(TC,TS,lambda i:-1)
    cmm(a,D,D+16,X,X+8,C,SP,SN,C,False)
    q='row_mask:0xf bank_mask:0xf'
    a(f'''v_add_f32_dpp v{O}, v{WX}, v{WX} quad_perm:[1,0,3,2] {q}
    v_subrev_f32_dpp v{O+1}, v{WX+1}, v{WX+1} quad_perm:[1,0,3,2] {q}
    s_add_u32 s31, s31, 64
    s_cmp_eq_u32 s45, 3
    s_cselect_b32 s31, 1024, s31
    v_mul_f32 v{O}, 0.5, v{O}
    v_mul_f32 v{O+1}, 0.5, v{O+1}
    s_waitcnt lgkmcnt(0)''')
    wload()
    a(f'''v_mov_b32_dpp v{O+2}, v{O} quad_perm:[3,3,3,3] {q}
    v_mov_b32_dpp v{O+3}, v{O+1} quad_perm:[3,3,3,3] {q}
    v_cndmask_b32 v{WR}, v{WR}, v{O}, s[56:57]
    v_cndmask_b32 v{WI}, v{WI}, v{O+1}, s[56:57]
    v_cndmask_b32 v{WR+8}, v{WR+8}, v{O+2}, s[56:57]
    v_cndmask_b32 v{WI+8}, v{WI+8}, v{O+3}, s[56:57]''')
    cmul(WR,WI,lambda i:1 if i<8 else -1)
    cmm(a,D,D+16,X,X+8,C,SN,SP,C)
    cmul(TC,TS,lambda i:1)
    cmm(a,D,D+16,X,X+8,C,SN,SP,C)
    a('v_xor_b32 v15, s46, v12')
    pack(D,X)
    a('s_cmp_eq_u32 s45, 4\ns_cbranch_scc1 pb_3')
    for g in range(4): a(f'v_xor_b32 v14, {16*g}, v15\nds_write_b64 v14, {vr(X+2*g,2)}')
    a('pb_3:\ns_sub_u32 s47, s32, s45\ns_cmp_eq_u32 s47, 5\ns_cbranch_scc1 pb_4')
    for g in range(4): a(f'v_xor_b32 v14, {16*g}, v15\nds_write_b64 v14, {vr(X+8+2*g,2)} offset:2048')
    a('pb_4:\ns_add_u32 s45, s45, 1\ns_cmp_lt_u32 s45, s32\ns_cbranch_scc1 pb_row')
    stamp(a)
    a('''s_add_u32 s47, s2, 1024
    s_cmp_eq_u32 s2, 0
    s_cselect_b32 s46, 32, s2
    s_cselect_b32 s47, 0, s47
    s_cselect_b32 s48, -1, 0
    s_mov_b32 s49, 0
    v_cvt_f32_u32 v11, v5
    v_mul_f32 v11, 0x3a000000, v11
    v_lshl_add_u32 v12, v4, 9, s46
    v_lshl_add_u32 v14, v4, 9, s47
    v_cvt_f32_u32 v12, v12
    v_cvt_f32_u32 v14, v14
    v_mul_f32 v12, v12, v11
    v_mul_f32 v14, v14, v11''')
    def fix():
        a(f'''v_lshlrev_b32 v15, 31, v5
        v_xor_b32 v15, {fx(-2.0**-21)}, v15
        v_mov_b32 v2, {fx(2.0**-21)}
        v_cndmask_b32 v{D+2}, v{D+2}, v2, s[48:49]
        v_cndmask_b32 v{D+4}, v{D+4}, v15, s[48:49]''')
    trig(11,(12,14),lambda s,e:64*e,amp=2.0**-20,fix=fix,dst=(P,R,Q))
    for i in range(8): a(f'v_mov_b32 v{T+i}, v{P+i}')
    a('s_cmp_lg_u32 s2, 0\ns_cbranch_scc1 pb_5')
    for i in range(4):
        a(f'v_mov_b32 v{R+i}, v{P+i}\nv_mov_b32 v{T+i}, v{Q+i}\nv_mov_b32 v{P+i}, 0\nv_mov_b32 v{Q+i}, 0\nv_mov_b32 v{R+4+i}, 0\nv_mov_b32 v{T+4+i}, 0')
    a('''pb_5:
    v_lshlrev_b32 v3, 6, v5
    v_bfe_u32 v14, v5, 1, 2
    v_lshl_add_u32 v3, v14, 4, v3
    v_lshl_add_u32 v3, v4, 3, v3
    v_add_u32 v3, s29, v3
    v_lshrrev_b32 v14, 4, v0
    v_bfe_u32 v15, v0, 2, 2
    v_lshlrev_b32 v11, 17, v14
    v_xor_b32 v14, v14, v15
    v_lshlrev_b32 v6, 12, v15
    v_lshl_add_u32 v6, v14, 6, v6
    v_and_b32 v14, 3, v0
    v_xor_b32 v14, v14, v4
    v_lshl_add_u32 v6, v14, 4, v6
    v_add_u32 v6, s29, v6
    v_xor_b32 v7, 32, v6
    v_and_b32 v14, 15, v0
    v_lshl_add_u32 v11, v14, 4, v11
    s_lshl_b32 s28, s2, 12
    s_lshl_b32 s30, s3, 8
    s_add_u32 s28, s28, s30
    s_waitcnt lgkmcnt(0)
    s_barrier''')
    def srd_i(al):
        for j in range(2):
            a(f'v_xor_b32 v14, {al*64^((2*j^(al>>1))*8)}, v13')
            for pl in range(2):
                for s in range(2): a(f'ds_read_b64_tr_b16 {vr(XB[al&1]+8*pl+4*s+2*j,2)}, v14 offset:{al*4096+pl*2048+s*1024+j*256}')
    def swr_i(al):
        pack(DB[al&1],O)
        for g in range(4):
            a(f'v_xor_b32 v14, {al*64^(g*16)}, v3')
            for pl in range(2): a(f'ds_write_b64 v14, {vr(O+8*pl+2*g,2)} offset:{al*4096+pl*2048}')
    stamp(a); sstage(srd_i,swr_i); stamp(a)
    for hz in range(2):
        for z in range(4*hz,4*hz+4):
            for pl in range(2): a(f'ds_read_b128 {vr(16+8*z+4*pl,4)}, v{6+(z&1)} offset:{pl*2048+z*256}')
        for z in range(4*hz,4*hz+4):
            for pl in range(2): a(f's_waitcnt lgkmcnt({7-2*(z&3)-pl})\nbuffer_store_dwordx4 {vr(16+8*z+4*pl,4)}, v11, s[20:23], s28 offen offset:{pl*2048}{sc}')
            a('s_add_u32 s28, s28, 0x80000')
    if fuse:
        srd(a,84,6,FL_OFF,4096); a('v_mov_b32 v240, 0\ns_lshl_b32 s57, s2, 2\ns_add_u32 s57, s57, 2048')
        return
    stamp(a); stamp_end(a,1)
```

```python
from gen import *
W1=((3,4,5,6),(7,8,9,10)); W2=((4,6,8,10),(11,12,13,14)); W3=((8,10,12,14),(15,16,17,18))
def D(**kw):
    d={k:dict(v) for k,v in DEF.items()}
    for k,v in kw.items(): d.setdefault(k,{}).update(v)
    return d
F=dict(fuse=1)
Z=dict(fuse=0)
P=dict(one=1,pf=256,pfst=(3,4,5,6,7,9))
V=dict(
a=D(k3s=dict(mp=0)),
b=D(k2=dict(wd=((11,12,13,14),(15,16,17,18)),pfst=(3,4,5,6,7,8))),
)
for k,v in V.items(): build(f'v_{k}.s',**v); build(f'stamp_{k}.s',**v)
```
